```python
import torch

def _softmax(x, axis=-1):
    return torch.softmax(x, dim=axis)

def _gelu(x):
    return torch.nn.functional.gelu(x, approximate='tanh')

def _silu(x):
    return torch.nn.functional.silu(x)

def _sigmoid(x):
    return torch.sigmoid(x)

def _layernorm(x, axis=-1, eps=1e-05):
    m = x.mean(dim=axis, keepdim=True)
    v = x.var(dim=axis, keepdim=True, unbiased=False)
    return (x - m) / torch.sqrt(v + eps)

def _scatter_add(tgt, idx, src, axis=0):
    return tgt.clone().index_add_(axis, idx, src)

def _segment_sum(src, seg, n):
    out = torch.zeros((n,) + src.shape[1:], dtype=src.dtype)
    return out.index_add_(0, seg, src)

def _pad(x, pw):
    flat = tuple((v for pair in reversed(pw) for v in pair))
    return torch.nn.functional.pad(x, flat)
kernel_name = 'adaLN_cond__sliding_block_cached__geglu_ffn__decode'

def setup_inputs():

    _w = lambda a: (lambda t: t.to(torch.bfloat16) if t.is_floating_point() else t)(torch.as_tensor(a))

    def _A_setup():
        B, Sq, D = (2, 1, 640)
        Hq, Hkv, Sk, Dh = (32, 32, 4096, 192)
        assert Hq % Hkv == 0, (Hq, Hkv)
        return {'x': _w((lambda *s: torch.randn(*s, dtype=torch.bfloat16) * 0.05)(B, Sq, D)), 'k_cache': _w((lambda *s: torch.randn(*s, dtype=torch.bfloat16) * 3.2)(B, Hkv, Sk, Dh)), 'v_cache': _w((lambda *s: torch.randn(*s, dtype=torch.bfloat16) * 0.4)(B, Hkv, Sk, Dh)), 'wq': _w((lambda *s: torch.randn(*s, dtype=torch.bfloat16) * 3.2)(D, Hq * Dh) * D ** (-0.5)), 'wo': _w((lambda *s: torch.randn(*s, dtype=torch.bfloat16) * 0.4)(Hq * Dh, D) * (Hq * Dh) ** (-0.5))}
    _A_in = _A_setup()

    def _B_setup():
        B, S, D, F = (2, 1, 640, 1536)
        return {'x': _w((lambda *s: torch.randn(*s, dtype=torch.bfloat16) * 0.05)(B, S, D)), 'w_gate': _w((lambda *s: torch.randn(*s, dtype=torch.bfloat16) * 0.05)(D, F)), 'w_up': _w((lambda *s: torch.randn(*s, dtype=torch.bfloat16) * 0.05)(D, F)), 'w_down': _w((lambda *s: torch.randn(*s, dtype=torch.bfloat16) * 0.05)(F, D))}
    _B_in = _B_setup()
    return {'A_x': _A_in['x'], 'A_k_cache': _A_in['k_cache'], 'A_v_cache': _A_in['v_cache'], 'A_wq': _A_in['wq'], 'A_wo': _A_in['wo'], 'B_x': _B_in['x'], 'B_w_gate': _B_in['w_gate'], 'B_w_up': _B_in['w_up'], 'B_w_down': _B_in['w_down'], 'c': _w((lambda *s: torch.randn(*s, dtype=torch.bfloat16) * 0.1)(2, 640) * 8.0), 'w_mod': _w((lambda *s: torch.randn(*s, dtype=torch.bfloat16) * 0.1)(640, 6 * 640) * 640 ** (-0.5) * 8.0)}

def reference(A_x, A_k_cache, A_v_cache, A_wq, A_wo, B_x, B_w_gate, B_w_up, B_w_down, c, w_mod):

    def _A_ref(x, k_cache, v_cache, wq, wo):
        B, Sq, D = x.shape
        Hq, Dh = (32, 192)
        Hkv, Sk = (k_cache.shape[1], k_cache.shape[2])
        W = min(4096, max(256, Sk // 4))
        rep = Hq // Hkv
        q = (lambda x, *d: x.permute(*d))((x @ wq).reshape(B, Sq, Hq, Dh), 0, 2, 1, 3)
        k = (lambda x, n, axis: torch.repeat_interleave(x, n, dim=axis))(k_cache[:, :, Sk - W:, :], rep, axis=1)
        v = (lambda x, n, axis: torch.repeat_interleave(x, n, dim=axis))(v_cache[:, :, Sk - W:, :], rep, axis=1)
        scores = torch.einsum('bhqd,bhkd->bhqk', q, k) * Dh ** (-0.5)
        p = _softmax(scores, axis=-1)
        o = torch.einsum('bhqk,bhkd->bhqd', p, v)
        return (lambda x, *d: x.permute(*d))(o, 0, 2, 1, 3).reshape(B, Sq, Hq * Dh) @ wo

    def _B_ref(x, w_gate, w_up, w_down):
        return _gelu(x @ w_gate) * (x @ w_up) @ w_down
    x = A_x
    mod = (_silu(c) @ w_mod).reshape(c.shape[0], 6, 1, -1)
    sa, ca, ga, sb, cb, gb = (mod[:, 0].clone(), mod[:, 1].clone(), mod[:, 2].clone(), mod[:, 3].clone(), mod[:, 4].clone(), mod[:, 5].clone())
    h = _layernorm(x, axis=-1) * (1 + ca) + sa
    x = x + ga * _A_ref(h, A_k_cache, A_v_cache, A_wq, A_wo)
    h = _layernorm(x, axis=-1) * (1 + cb) + sb
    x = x + gb * _B_ref(h, B_w_gate, B_w_up, B_w_down)
    return x
```

```python
import re

def _regs(tok):
    tok = tok.strip()
    neg = tok.lstrip('-')
    if neg.startswith('abs(') or neg.startswith('|'):
        neg = neg.replace('abs(', '').replace(')', '').replace('|', '')
    tok = neg
    m = re.fullmatch(r'([vsa])(\d+)', tok)
    if m: return [(m.group(1), int(m.group(2)))]
    m = re.fullmatch(r'([vsa])\[(\d+):(\d+)\]', tok)
    if m: return [(m.group(1), i) for i in range(int(m.group(2)), int(m.group(3)) + 1)]
    if tok in ('vcc', 'vcc_lo', 'vcc_hi'): return [('x', 'vcc')]
    if tok in ('exec', 'exec_lo', 'exec_hi'): return [('x', 'exec')]
    if tok == 'm0': return [('x', 'm0')]
    if tok == 'scc': return [('x', 'scc')]
    return []

TRANS = ('v_exp_f32', 'v_log_f32', 'v_rcp_f32', 'v_rsq_f32', 'v_sqrt_f32', 'v_sin_f32', 'v_cos_f32', 'v_rcp_iflag_f32')

class Ins:
    __slots__ = ('text', 'op', 'ops', 'kind', 'dst', 'src', 'dpp', 'lds', 'wide_store', 'mfma_c')
    def __init__(self, text):
        self.text = text
        t = text.split(';')[0].strip()
        parts = t.split(None, 1)
        self.op = parts[0]
        rest = parts[1] if len(parts) > 1 else ''
        ops = []; depth = 0; cur = ''
        for ch in rest:
            if ch == '[': depth += 1
            if ch == ']': depth -= 1
            if ch == ',' and depth == 0: ops.append(cur.strip()); cur = ''
            else: cur += ch
        if cur.strip(): ops.append(cur.strip())
        mods = ''
        if ops:
            sp = ops[-1].split(None, 1)
            ops[-1] = sp[0]
            mods = sp[1] if len(sp) > 1 else ''
        self.ops = ops
        op = self.op
        self.dpp = ('_dpp' in op) or ('quad_perm' in mods) or ('row_' in mods)
        self.lds = False; self.wide_store = False; self.mfma_c = []
        R = [_regs(o) for o in ops]
        flat = lambda L: [r for l in L for r in l]
        if op.startswith('v_mfma'):
            self.kind = 'mfma'; self.dst = R[0]; self.src = flat(R[1:]); self.mfma_c = R[3] if len(R) > 3 else []
        elif op.startswith('v_cmp'):
            self.kind = 'valu'; self.dst = R[0]; self.src = flat(R[1:])
        elif op.startswith('v_readfirstlane') or op.startswith('v_readlane'):
            self.kind = 'valu'; self.dst = R[0]; self.src = flat(R[1:])
        elif op.startswith('v_permlane'):
            self.kind = 'valu'; self.dst = R[0] + R[1]; self.src = R[0] + R[1]
        elif op.startswith('v_add_co') or op.startswith('v_sub_co') or op.startswith('v_addc_co') or op.startswith('v_subb_co'):
            self.kind = 'valu'; self.dst = R[0] + R[1]; self.src = flat(R[2:])
        elif op.startswith('v_'):
            self.kind = 'valu'; self.dst = R[0]; self.src = flat(R[1:])
            if op.startswith('v_fmac') or op.startswith('v_dot2c') or op.startswith('v_writelane') or self.dpp:
                self.src = self.src + R[0]
            if op.startswith('v_cndmask') and len(ops) == 3:
                self.src = self.src + [('x', 'vcc')]
        elif op.startswith('buffer_') or op.startswith('global_'):
            self.kind = 'vmem'
            is_lds = bool(re.search(r'\blds\b', mods)); self.lds = is_lds
            if 'store' in op or ('atomic' in op):
                self.dst = []; self.src = flat(R)
                if 'x3' in op or 'x4' in op: self.wide_store = True
            elif is_lds:
                self.dst = []; self.src = flat(R) + [('x', 'm0')]
            else:
                self.dst = R[0]; self.src = flat(R[1:])
        elif op.startswith('ds_'):
            self.kind = 'ds'
            if op.startswith('ds_read') or op.startswith('ds_bpermute') or op.startswith('ds_swizzle') or op.startswith('ds_permute'):
                self.dst = R[0]; self.src = flat(R[1:])
            else:
                self.dst = []; self.src = flat(R)
        elif op.startswith('s_'):
            self.kind = 'salu'
            if op.startswith(('s_cmp', 's_cbranch', 's_branch', 's_waitcnt', 's_barrier', 's_nop', 's_sleep', 's_endpgm', 's_setprio', 's_bitcmp')):
                self.dst = []; self.src = flat(R)
            else:
                self.dst = R[0] if R else []; self.src = flat(R[1:])
        else:
            self.kind = 'other'; self.dst = []; self.src = []

    def states(self):
        if self.op == 's_nop': return int(self.ops[0], 0) + 1
        return 1

def need(p, c):
    n = 0
    pd = set(p.dst); cs = set(c.src); cd = set(c.dst)
    pv = {r for r in pd if r[0] in 'va'}
    ps = {r for r in pd if r[0] == 's' or r == ('x', 'vcc')}
    if p.kind == 'valu':
        if c.kind == 'mfma' and pv & cs: n = max(n, 2)
        if c.kind == 'valu' and c.dpp and pv & cs: n = max(n, 2)
        if c.op.startswith('v_permlane') and pv & cs: n = max(n, 2)
        if (c.op.startswith('v_readlane') or c.op.startswith('v_readfirstlane')) and pv & cs: n = max(n, 1)
        if p.op.replace('_e32', '').replace('_e64', '') in TRANS and c.kind in ('valu', 'mfma') and pv & cs: n = max(n, 1)
        if ps:
            if c.kind == 'valu' and ps & cs: n = max(n, 4 if c.op.startswith(('v_readlane', 'v_writelane')) else 2)
            if c.kind == 'vmem' and ps & cs: n = max(n, 5)
            if c.kind == 'salu' and ps & cs: n = max(n, 2)
            if c.kind == 'ds' and ps & cs: n = max(n, 2)
        if ('x', 'exec') in pd: n = max(n, 5)
        if 'sdwa' in p.op and c.kind == 'valu' and pv & cs and 'dst_sel:DWORD' not in p.text: n = max(n, 1)
    if p.kind == 'mfma':
        if c.kind == 'mfma':
            cC = set(c.mfma_c)
            cAB = cs - cC
            if pd & cAB: n = max(n, 8)
            if pd & cC and (cC != pd or p.op != c.op): n = max(n, 8)
            if pd & cd and cd != pd: n = max(n, 6)
        elif c.kind in ('valu', 'vmem', 'ds'):
            if pd & (cs | cd): n = max(n, 8)
        if c.kind == 'valu' and set(p.mfma_c) & cd: n = max(n, 3)
    if p.kind == 'salu':
        if ('x', 'm0') in pd and ((c.kind == 'vmem' and c.lds) or c.op.startswith(('s_sendmsg', 's_movrel')) or 'addtid' in c.op): n = max(n, 1)
        if ('x', 'exec') in pd and c.kind == 'mfma': n = max(n, 1)
    if p.kind == 'vmem' and p.wide_store:
        data = set(p.src)
        if c.kind == 'valu' and data & cd & {r for r in data if r[0] == 'v'}: n = max(n, 2)
        elif c.kind in ('vmem', 'ds', 'mfma') and data & cd: n = max(n, 1)
    return n

class Asm:
    def __init__(self):
        self.items = []
        self.nlab = 0
    def __call__(self, s):
        for l in s.strip('\n').split('\n'):
            l = l.strip()
            if not l or l.startswith(';'):
                continue
            if l.endswith(':') and ' ' not in l:
                if l.startswith('.L'): self.items.append(('r0', l)); continue
                self.items.append(('l', l[:-1])); continue
            if l.startswith('.'):
                self.items.append(('r', l)); continue
            self.items.append(('i', Ins(l)))
    def label(self, name): self.items.append(('l', name))
    def new(self, base='L'):
        self.nlab += 1; return f'{base}_{self.nlab}'
    def text(self, maxwin=10):
        out = []; hist = []
        inserted = 0
        def flush_all():
            worst = 0
            dist = 0
            for p in reversed(hist):
                w = 0
                if p.kind == 'mfma': w = 8
                elif p.kind == 'valu':
                    w = 2
                    if any(r[0] == 's' or r == ('x', 'vcc') for r in p.dst): w = 5
                elif p.kind == 'salu' and ('x', 'm0') in p.dst: w = 1
                elif p.kind == 'vmem' and p.wide_store: w = 2
                worst = max(worst, w - dist)
                dist += p.states()
                if dist >= maxwin: break
            return worst
        for kind, it in self.items:
            if kind == 'l':
                w = flush_all()
                if w > 0:
                    out.append(f'    s_nop {w-1}'); inserted += 1
                hist = []
                out.append(it + ':')
            elif kind == 'r0':
                out.append(it)
            elif kind == 'r':
                out.append('    ' + it)
            else:
                dist = 0; w = 0
                for p in reversed(hist):
                    w = max(w, need(p, it) - dist)
                    dist += p.states()
                    if dist >= maxwin: break
                is_branch = it.op.startswith(('s_cbranch', 's_branch', 's_setpc', 's_swappc'))
                if is_branch:
                    w = max(w, flush_all() - 1)
                if w > 0:
                    nop = Ins(f's_nop {w-1}')
                    out.append('    ' + nop.text); hist.append(nop); inserted += 1
                out.append('    ' + it.text)
                hist.append(it)
                if len(hist) > 16: hist = hist[-16:]
        return '\n'.join(out) + '\n'
```

```python
import sys, struct
from asmlib import Asm

KNAME = "adaLN_cond__sliding_block_cached__geglu_ffn__decode_kernel"
REGION = 8192
O_MP, O_QP, O_OP, O_ML, O_XC, O_ST, O_P1, O_P2, O_GP = 0, 512, 2048, 2816, 2880, 2944, 3072, 3584, 4096
O_H2 = 3072
EPOCH_OFF = 256 * REGION
WS_BYTES = 256 * REGION + 128
PROF_OFF = 4 << 20
L_V = 0
L_W = 98304
L_SC = 131072
L_H = 131712
L_Q = 132032
L_S = 132416
L_P = 133440
L_AO = 133952
L_H2 = 134976
L_ACT = 135232
L_FLG = 135488
L_MW = 135680
LDS_BYTES = L_MW + 24576
F_KGO, F_MLAND, F_WQLAND, F_SCRDY, F_QRDY, F_SCNT, F_TAG, F_FAST, F_HRDY, F_QS, F_EPOCH = [4 * i for i in range(11)]
OOB = 0x80000000
LOG2E = 1.4426950408889634
SCALE = 192 ** -0.5
def f2u(x): return struct.unpack('<I', struct.pack('<f', x))[0]
def fl(x): return hex(f2u(x))
VF, VT, VM8, VTAG, VC, VC2, VP1, VP0 = 'v160', 'v161', 'v162', 'v163', 'v164', 'v165', 'v166', 'v167'
R_K, R_KX, R_LD, R_CH, R_P0, R_P0X, R_P1, R_P1X, R_LDX, R_CHX = 1, 2, 3, 4, 5, 6, 7, 8, 9, 10

class Cfg:
    prof = 0
    WL = 32
    WK = 3
    WV = 4
    SIDX = 20
    spin_max = 1 << 20
    poll_max = 1 << 15
    poll_sleep = 0
    fast = 1
    nt = 1
    pipe = 0
    pipe_r = 0
    sp_m = 16
    sp_q = 16
    sp_l = 1
    sp_r = 2
    chk4 = 0

def gen(cfg=Cfg):
    a = Asm()
    NT = 'nt' if cfg.nt else ''
    def stamp(i):
        if cfg.prof == 1 or (cfg.prof == 2 and i in (0, 12, 22)):
            a(f"""
            s_memrealtime s[98:99]
            s_waitcnt lgkmcnt(0)
            v_writelane_b32 {VP0}, s98, {i}
            """)
    def prof_out():
        if cfg.prof:
            a(f"""
            s_mul_i32 s6, s2, 12
            s_add_u32 s6, s6, s3
            s_lshl_b32 s6, s6, 8
            s_add_u32 s6, s6, {PROF_OFF}
            v_lshlrev_b32 {VP1}, 2, v0
            v_add_u32 {VP1}, s6, {VP1}
            s_mov_b32 s38, 0x7fffffff
            buffer_store_dword {VP0}, {VP1}, s[36:39], 0 offen
            s_mov_b32 s38, {WS_BYTES}
            """)
    def spin(flag, target):
        L = a.new('SP'); D = a.new('SD')
        a(f"""
        s_mov_b32 s96, 0
        {L}:
        ds_read_b32 {VT}, {VF} offset:{flag}
        s_add_u32 s96, s96, 1
        s_waitcnt lgkmcnt(0)
        v_readfirstlane_b32 s97, {VT}
        s_cmp_ge_u32 s97, {target}
        s_cbranch_scc1 {D}
        s_cmp_gt_u32 s96, {cfg.spin_max}
        s_cbranch_scc1 {D}
        s_sleep 1
        s_branch {L}
        {D}:
        """)
    def setflag(flag, val=1):
        a(f"""
        v_mov_b32 {VT}, {val}
        ds_write_b32 {VF}, {VT} offset:{flag}
        """)
    def addflag(flag):
        a(f"""
        v_mov_b32 {VT}, 1
        s_mov_b64 exec, 1
        ds_add_u32 {VF}, {VT} offset:{flag}
        s_mov_b64 exec, -1
        """)
    def pick(regs, step):
        regs = list(regs)
        return regs if cfg.chk4 else regs[step-1::step]
    def tagcheck(regs, mask=None, extra=None):
        r = list(regs)
        a(f"v_xor_b32 {VC}, s95, {r[0]}")
        for x in r[1:]:
            a(f"v_bitop3_b32 {VC}, {VC}, {x}, s95 bitop3:0xf6")
        if extra:
            er, em = extra
            a(f"v_xor_b32 {VC2}, s95, {er[0]}")
            for x in er[1:]:
                a(f"v_bitop3_b32 {VC2}, {VC2}, {x}, s95 bitop3:0xf6")
            a(f"v_cndmask_b32 {VC2}, 0, {VC2}, {em}")
            a(f"v_or_b32 {VC}, {VC}, {VC2}")
        a(f"v_and_b32 {VC}, 0xff, {VC}")
        a(f"v_cmp_ne_u32 vcc, 0, {VC}")
        a(f"s_and_b64 vcc, vcc, {mask if mask else 'exec'}")
    def poll(loadfn, regs, mask=None, itstamp=None, extra=None):
        L = a.new('PL'); D = a.new('PD')
        a("s_mov_b32 s96, 0")
        a.label(L)
        loadfn()
        a("s_add_u32 s96, s96, 1")
        a("s_waitcnt vmcnt(0)")
        tagcheck(regs, mask, extra)
        a(f"""
        s_cbranch_scc0 {D}
        s_cmp_gt_u32 s96, {cfg.poll_max}
        s_cbranch_scc1 {D}
        """)
        if cfg.poll_sleep: a(f"s_sleep {cfg.poll_sleep}")
        a(f"""
        s_branch {L}
        {D}:
        """)
        if cfg.prof and itstamp is not None:
            a(f"v_writelane_b32 {VP0}, s96, {itstamp}")
    def poll2(loadfn, nloads, baseA, baseB, chk, consume, itstamp=None, space=2, mask=None, extra=None):
        ex = (lambda b: extra(b)) if extra else (lambda b: None)
        if not cfg.pipe:
            poll(lambda: loadfn(baseA), chk(baseA), itstamp=itstamp, mask=mask, extra=ex(baseA)); consume(baseA); return
        L = a.new('QL'); DA = a.new('QA'); DB = a.new('QB'); J = a.new('QJ')
        a("s_mov_b32 s96, 0")
        loadfn(baseA)
        if space: a(f"s_sleep {space}")
        a.label(L)
        loadfn(baseB)
        a("s_add_u32 s96, s96, 1")
        a(f"s_waitcnt vmcnt({nloads})")
        tagcheck(chk(baseA), mask, ex(baseA))
        a(f"s_cbranch_scc0 {DA}")
        loadfn(baseA)
        a(f"s_waitcnt vmcnt({nloads})")
        tagcheck(chk(baseB), mask, ex(baseB))
        a(f"""s_cbranch_scc0 {DB}
        s_cmp_gt_u32 s96, {cfg.poll_max}
        s_cbranch_scc0 {L}
        {DB}:""")
        consume(baseB)
        a(f"s_branch {J}")
        a.label(DA)
        consume(baseA)
        a.label(J)
        if cfg.prof == 1 and itstamp is not None:
            a(f"v_writelane_b32 {VP0}, s96, {itstamp}")
    def tagit(regs):
        for r in regs: a(f"v_bfi_b32 {r}, {VM8}, {VTAG}, {r}")
    def gettag():
        spin(F_TAG, 0x100)
        a("s_and_b32 s95, s97, 0xff")
        a(f"v_mov_b32 {VM8}, 0xff")
        a(f"v_mov_b32 {VTAG}, s95")
    def pub_local(instr):
        if not cfg.fast:
            a(instr + " sc1"); return
        F = a.new('PF'); D = a.new('PE')
        a(f"""
        s_cmp_eq_u32 s75, 2
        s_cbranch_scc1 {F}
        {instr} sc1
        s_branch {D}
        {F}:
        {instr}
        {D}:
        """)
    def vr(base, n): return [f"v{base+i}" for i in range(n)]
    def rng(base, n): return f"v[{base}:{base+n-1}]"
    def srd(s, ptr, size):
        a(f"""
        s_mov_b32 s{s}, s{ptr}
        s_mov_b32 s{s+1}, s{ptr+1}
        s_mov_b32 s{s+2}, {size}
        s_mov_b32 s{s+3}, 0x00020000
        """)
    def xrow16_sum(regs, t, op='v_add_f32'):
        for sw in ('v_permlane16_swap_b32', 'v_permlane32_swap_b32'):
            for i, r in enumerate(regs): a(f"v_mov_b32 v{t+i}, {r}")
            for i, r in enumerate(regs): a(f"{sw} v{t+i}, {r}")
            for i, r in enumerate(regs): a(f"{op} {r}, {r}, v{t+i}")
    def transred(b):
        a(f"""v_permlane32_swap_b32 v{b}, v{b+2}
        v_permlane32_swap_b32 v{b+1}, v{b+3}
        v_add_f32 v{b}, v{b}, v{b+2}
        v_add_f32 v{b+1}, v{b+1}, v{b+3}
        v_permlane16_swap_b32 v{b}, v{b+1}
        v_add_f32 v{b}, v{b}, v{b+1}""")
    def row16_sum(regs, op='v_add_f32'):
        for rot in (8, 4, 2, 1):
            for r in regs: a(f"{op}_dpp {r}, {r}, {r} row_ror:{rot} row_mask:0xf bank_mask:0xf")
    def bfround(regs, t):
        regs = list(regs)
        for i in range(0, len(regs), 2):
            if i + 1 < len(regs):
                a(f"""v_cvt_pk_bf16_f32 v{t}, {regs[i]}, {regs[i+1]}
                v_lshlrev_b32 {regs[i]}, 16, v{t}
                v_and_b32 {regs[i+1]}, 0xffff0000, v{t}""")
            else:
                a(f"""v_cvt_pk_bf16_f32 {regs[i]}, {regs[i]}, {regs[i]}
                v_lshlrev_b32 {regs[i]}, 16, {regs[i]}""")
    def unpack(src, lo, hi):
        a(f"""v_lshlrev_b32 {lo}, 16, {src}
        v_and_b32 {hi}, 0xffff0000, {src}""")
    def fdiv(dst, num, den_rcp, den, t):
        a(f"""v_mul_f32 {dst}, {num}, {den_rcp}
        v_fma_f32 {t}, -{dst}, {den}, {num}
        v_fma_f32 {dst}, {t}, {den_rcp}, {dst}""")
    def ln_finish(mean, var, t):
        bfround([mean, var], t)
        a(f"v_add_f32 {var}, {fl(1e-5)}, {var}")
        bfround([var], t)
        a(f"v_sqrt_f32 {var}, {var}")
        bfround([var], t)
    def pkadd(d, x, y): a(f"v_pk_add_f32 {rng(d,2)}, {rng(x,2)}, {rng(y,2)}")
    def tr_geom(b):
        a(f"""
        v_lshrrev_b32 v{b}, 4, v0
        v_lshrrev_b32 v{b+1}, 2, v0
        v_and_b32 v{b+1}, 3, v{b+1}
        v_and_b32 v{b+2}, 3, v0
        v_lshrrev_b32 v{b+3}, 1, v{b+1}
        v_and_b32 v{b+4}, 1, v{b}
        v_lshlrev_b32 v{b+4}, 1, v{b+4}
        v_or_b32 v{b+3}, v{b+3}, v{b+4}
        v_lshlrev_b32 v{b+4}, 3, v{b}
        v_add_u32 v{b+4}, v{b+4}, v{b+1}
        v_lshlrev_b32 v{b+5}, 3, v{b+2}
        """)
    def off128(dst_even, dst_odd, rs, t):
        a(f"""
        v_lshrrev_b32 v{t}, 3, v0
        v_and_b32 v{t+1}, 7, v0
        v_lshrrev_b32 v{t+2}, 1, v{t}
        v_and_b32 v{t+2}, 1, v{t+2}
        v_lshrrev_b32 v{t+3}, 1, v{t+1}
        v_xor_b32 v{t+3}, v{t+3}, v{t+2}
        v_lshlrev_b32 v{t+3}, 5, v{t+3}
        v_and_b32 v{t+2}, 1, v{t+1}
        v_lshlrev_b32 v{t+2}, 4, v{t+2}
        v_or_b32 v{t+3}, v{t+3}, v{t+2}
        """)
        if isinstance(rs, int): a(f"v_mul_u32_u24 {dst_even}, {rs}, v{t}")
        else: a(f"v_mul_lo_u32 {dst_even}, v{t}, {rs}")
        a(f"""
        v_add_u32 {dst_even}, {dst_even}, v{t+3}
        v_xor_b32 {dst_odd}, 64, {dst_even}
        """)
    def off384(even0, odd0, rs, t):
        for ph in range(3):
            a(f"""
            v_add_u32 v{t}, {64*ph}, v0
            v_mul_u32_u24 v{t+1}, 2731, v{t}
            v_lshrrev_b32 v{t+1}, 16, v{t+1}
            v_mul_u32_u24 v{t+2}, 24, v{t+1}
            v_sub_u32 v{t+2}, v{t}, v{t+2}
            v_lshrrev_b32 v{t+3}, 1, v{t+1}
            v_and_b32 v{t+3}, 1, v{t+3}
            v_lshrrev_b32 v{t}, 1, v{t+2}
            v_xor_b32 v{t}, v{t}, v{t+3}
            v_lshlrev_b32 v{t}, 5, v{t}
            v_and_b32 v{t+2}, 1, v{t+2}
            v_lshlrev_b32 v{t+2}, 4, v{t+2}
            v_or_b32 v{t}, v{t}, v{t+2}
            v_mul_u32_u24 v{t+2}, {rs}, v{t+1}
            v_add_u32 v{even0+ph}, v{t+2}, v{t}
            v_xor_b32 v{odd0+ph}, 64, v{even0+ph}
            """)

    a(f"""
    s_cmp_ge_u32 s2, 256
    s_cbranch_scc1 L_END
    s_load_dwordx16 s[8:23], s[0:1], 0
    s_load_dwordx8 s[24:31], s[0:1], 64
    s_load_dwordx4 s[32:35], s[0:1], 96
    v_lshrrev_b32 v1, 6, v0
    v_and_b32 v0, 63, v0
    s_and_b32 s4, s2, 7
    s_lshr_b32 s5, s2, 3
    v_readfirstlane_b32 s3, v1
    v_mov_b32 {VF}, {L_FLG}
    """)
    if cfg.prof: a(f"v_mov_b32 {VP0}, 0")
    a(f"""
    s_cmp_lg_u32 s3, 0
    s_cbranch_scc1 L_NOZ
    v_mov_b32 v2, 0
    v_lshlrev_b32 v3, 2, v0
    v_add_u32 v3, {L_FLG}, v3
    s_mov_b64 exec, 0xffff
    ds_write_b32 v3, v2
    s_mov_b64 exec, -1
    L_NOZ:
    s_lshr_b32 s40, s5, 3              ; hl
    s_lshl_b32 s41, s4, 2
    s_add_u32 s41, s41, s40            ; head
    s_mul_i32 s42, s5, 26
    s_lshr_b32 s42, s42, 8             ; q10 = j/10
    s_mul_i32 s43, s42, 10
    s_sub_u32 s43, s5, s43             ; kj = j%10
    s_lshl_b32 s44, s2, 13
    s_lshr_b32 s45, s5, 2
    s_and_b32 s45, s45, 1
    s_and_b32 s46, s5, 7               ; r
    s_lshl_b32 s6, s45, 5
    s_add_u32 s6, s6, s41
    s_mul_i32 s47, s6, 1572864
    s_and_b32 s6, s5, 3
    s_mul_i32 s6, s6, 98304
    s_add_u32 s47, s47, s6
    s_add_u32 s47, s47, 1179648
    s_mov_b32 s48, 0xffff0000
    s_mov_b32 s49, 0
    s_mov_b32 s50, 0
    s_mov_b32 s51, 0x0000ffff
    s_mov_b32 s52, 0
    s_mov_b32 s53, 0xffff0000
    s_mov_b32 s75, 1
    s_waitcnt lgkmcnt(0)
    s_barrier
    """)
    stamp(0)
    srd(36, 34, WS_BYTES)
    a(f"""
    s_cmp_lt_u32 s3, 8
    s_cbranch_scc1 L_KWAVE
    s_cmp_eq_u32 s3, 9
    s_cbranch_scc1 L_CHAIN
    s_cmp_gt_u32 s3, 9
    s_cbranch_scc1 L_POST
    """)

    W = cfg.WL
    a(f"s_mov_b32 s78, {R_LD}")
    a("s_setprio 2")
    srd(56, 28, 4915200)
    srd(60, 14, 7864320)
    off128('v10', 'v11', 7680, 1)
    a(f"""
    s_lshr_b32 s6, s4, 1
    s_mul_i32 s84, s6, {160*7680}
    s_and_b32 s6, s4, 1
    s_mul_i32 s6, s6, 30
    s_add_u32 s6, s6, s5
    s_lshl_b32 s6, s6, 7
    s_add_u32 s84, s84, s6
    s_mul_i32 s87, s46, {80*12288}
    s_mul_i32 s6, s41, 384
    s_add_u32 s87, s87, s6
    s_cmp_ge_u32 s5, 30
    s_cbranch_scc1 L_LD_NOM
    """)
    def ldq(n, idx):
        gi, ph = n // 3, n % 3
        if idx >= W: a(f"s_waitcnt vmcnt({W-1})")
        if idx == 19 + W and idx != n:
            setflag(F_MLAND); stamp(2)
        a(f"""s_mov_b32 m0, {L_W + 1024*n}
        s_nop 0
        buffer_load_dwordx4 v{12 + 3*(gi & 1) + ph}, s[60:63], s87 offen {NT} lds""")
        if ph == 2: a(f"s_add_u32 s87, s87, {8*12288}")
    for i in range(20):
        if i >= W: a(f"s_waitcnt vmcnt({W-1})")
        a(f"""s_mov_b32 m0, {L_MW + 1024*i}
        s_nop 0
        buffer_load_dwordx4 v{10 + (i & 1)}, s[56:59], s84 offen {NT} lds
        s_add_u32 s84, s84, {8*7680}""")
        if i == 19: off384(12, 15, 12288, 1)
    for n in range(30): ldq(n, 20 + n)
    setflag(F_KGO)
    stamp(1)
    if 19 + W > 49:
        a("s_waitcnt vmcnt(30)")
        setflag(F_MLAND); stamp(2)
    a("s_branch L_LD_WAITQ")
    a.label("L_LD_NOM")
    a(f"s_mov_b32 s78, {R_LDX}")
    off384(12, 15, 12288, 1)
    for n in range(30): ldq(n, n)
    setflag(F_KGO)
    a.label("L_LD_WAITQ")
    a("s_waitcnt vmcnt(0)")
    setflag(F_WQLAND)
    stamp(3)
    gettag()
    a("s_branch L_QSTAGE")

    a.label("L_KWAVE")
    a(f"""
    s_mov_b32 s78, {R_K}
    s_cmp_lt_u32 s5, 30
    s_cbranch_scc1 L_K_ROLE
    s_mov_b32 s78, {R_KX}
    L_K_ROLE:
    """)
    srd(56, 10, 100663296)
    srd(60, 12, 100663296)
    srd(64, 16, 7864320)
    KV = 8
    off384(72, 75, 384, 1)
    off128('v78', 'v79', 1280, 1)
    a(f"""
    v_lshrrev_b32 v1, 3, v0
    v_mul_u32_u24 v1, 384, v1
    v_and_b32 v2, 7, v0
    v_lshlrev_b32 v2, 4, v2
    v_add_u32 v1, v1, v2
    s_mul_i32 s84, s3, 12288
    s_add_u32 s85, s84, {L_V}
    s_add_u32 s84, s84, s47
    s_mul_i32 s80, s4, 768
    s_lshl_b32 s6, s42, 8
    s_add_u32 s80, s80, s6
    s_lshl_b32 s6, s3, 5
    s_add_u32 s80, s80, s6
    s_mul_i32 s80, s80, 1280
    s_lshl_b32 s6, s43, 7
    s_add_u32 s80, s80, s6
    s_lshl_b32 s81, s3, 12
    s_add_u32 s81, s81, {L_W}
    """)
    spin(F_KGO, 1)
    stamp(1)
    def scores():
        spin(F_QRDY, 1)
        stamp(4)
        a(f"""
        v_add_u32 v3, {L_Q}, v2
        ds_read_b128 v[56:59], v3
        ds_read_b128 v[60:63], v3 offset:128
        ds_read_b128 v[64:67], v3 offset:256
        v_mov_b32 v68, 0
        v_mov_b32 v69, 0
        v_mov_b32 v70, 0
        v_mov_b32 v71, 0
        s_waitcnt lgkmcnt(0)
        """)
        for ph in range(3):
            for d in range(4):
                for gi in range(4):
                    a(f"v_dot2_f32_bf16 v{68+gi}, v{KV+4*(3*gi+ph)+d}, v{56+4*ph+d}, v{68+gi}")
        for mode in ("quad_perm:[1,0,3,2]", "quad_perm:[2,3,0,1]", "row_half_mirror"):
            for gi in range(4):
                a(f"v_add_f32_dpp v{68+gi}, v{68+gi}, v{68+gi} {mode} row_mask:0xf bank_mask:0xf")
        bfround(vr(68, 4), 7)
        for gi in range(4): a(f"v_mul_f32 v{68+gi}, {fl(SCALE)}, v{68+gi}")
        bfround(vr(68, 4), 7)
        a(f"""
        s_mov_b32 s88, 0x02020202
        s_mov_b32 s89, 0x02020202
        s_mov_b32 s90, 0x04040404
        s_mov_b32 s91, 0x04040404
        s_mov_b32 s92, 0x08080808
        s_mov_b32 s93, 0x08080808
        v_cndmask_b32 v68, v68, v69, s[88:89]
        v_cndmask_b32 v68, v68, v70, s[90:91]
        v_cndmask_b32 v68, v68, v71, s[92:93]
        v_and_b32 v3, 7, v0
        v_lshlrev_b32 v3, 5, v3
        v_lshrrev_b32 v4, 3, v0
        v_lshlrev_b32 v4, 2, v4
        v_add_u32 v3, v3, v4
        s_lshl_b32 s6, s3, 7
        s_add_u32 s6, s6, {L_S}
        v_add_u32 v3, s6, v3
        s_mov_b32 exec_lo, 0x0f0f0f0f
        s_mov_b32 exec_hi, 0x0f0f0f0f
        ds_write_b32 v3, v68
        s_mov_b64 exec, -1
        s_waitcnt lgkmcnt(0)
        """)
        addflag(F_SCNT)
        stamp(5)
    WK, WV = cfg.WK, cfg.WV
    assert cfg.SIDX >= 11 + WV and cfg.SIDX <= 24
    for idx in range(24):
        gi, ph = (idx % 12) // 3, idx % 3
        Wn = WK if idx < 12 else WV
        if idx == cfg.SIDX: scores()
        if idx >= Wn: a(f"s_waitcnt vmcnt({Wn-1})")
        if idx == 11 + WV: stamp(2)
        if ph == 0: a(f"s_add_u32 s86, s84, {3072*gi}")
        if idx < 12:
            a(f"buffer_load_dwordx4 {rng(KV+4*idx,4)}, v1, s[56:59], s86 offen offset:{128*ph} {NT}")
        else:
            a(f"""s_add_u32 m0, s85, {3072*gi + 1024*ph}
            s_nop 0
            buffer_load_dwordx4 v{72 + 3*(gi & 1) + ph}, s[60:63], s86 offen {NT} lds""")
    if cfg.SIDX == 24: scores()
    stamp(3)
    a(f"""
    s_cmp_eq_u32 s78, {R_KX}
    s_cbranch_scc1 L_K_NOWOLD
    """)
    for k in range(4):
        a(f"""s_waitcnt vmcnt({WV-1})
        s_add_u32 m0, s81, {1024*k}
        s_nop 0
        buffer_load_dwordx4 v{78 + (k & 1)}, s[64:67], s80 offen {NT} lds""")
        if k < 3: a(f"s_add_u32 s80, s80, {8*1280}")
    a(f"""
    s_waitcnt vmcnt(4)
    s_branch L_PV
    L_K_NOWOLD:
    s_waitcnt vmcnt(0)
    s_branch L_PV
    """)

    a.label("L_CHAIN")
    a(f"""s_mov_b32 s78, {R_CH}
    s_cmp_lt_u32 s5, 30
    s_cbranch_scc1 L_CH_ROLE
    s_mov_b32 s78, {R_CHX}
    L_CH_ROLE:""")
    a("s_setprio 3")
    srd(56, 8, 2560)
    srd(60, 26, 2560)
    a(f"""
    v_lshlrev_b32 v1, 2, v0
    v_mul_u32_u24 v2, 13, v0
    v_lshrrev_b32 v2, 8, v2
    v_mul_u32_u24 v3, 20, v2
    v_sub_u32 v3, v0, v3               ; c = lane%20
    v_cmp_gt_u32 vcc, 40, v0
    v_mov_b32 v7, {OOB:#x}
    s_mul_i32 s6, s46, 160
    v_mul_u32_u24 v4, 1280, v2
    v_lshlrev_b32 v5, 3, v3
    v_add3_u32 v5, v4, v5, s6
    v_cndmask_b32 v5, v7, v5, vcc
    s_lshr_b32 s6, s4, 1
    s_mul_i32 s6, s6, 320
    v_lshlrev_b32 v6, 4, v3
    v_add3_u32 v6, v4, v6, s6
    v_cndmask_b32 v6, v7, v6, vcc
    buffer_load_dwordx4 v[20:23], v6, s[60:63], 0 offen
    """)
    for b in range(2):
        for i in range(5):
            a(f"buffer_load_dword v{8+5*b+i}, v1, s[56:59], 0 offen offset:{1280*b+256*i}")
    a(f"""
    buffer_load_dwordx2 v[18:19], v5, s[56:59], 0 offen
    s_waitcnt vmcnt(11)
    """)
    stamp(1)
    for i in range(4): unpack(f"v{20+i}", f"v{24+2*i}", f"v{25+2*i}")
    for i in range(8): a(f"v_mul_f32 v{32+i}, {fl(-LOG2E)}, v{24+i}")
    for i in range(8): a(f"v_exp_f32 v{32+i}, v{32+i}")
    for i in range(8): a(f"v_add_f32 v{32+i}, 1.0, v{32+i}")
    for i in range(8): a(f"v_rcp_f32 v{40+i}, v{32+i}")
    for i in range(8): fdiv(f"v{48+i}", f"v{24+i}", f"v{40+i}", f"v{32+i}", "v56")
    for i in range(4): a(f"v_cvt_pk_bf16_f32 v{20+i}, v{48+2*i}, v{49+2*i}")
    a(f"""
    v_mul_u32_u24 v4, 320, v2
    v_lshlrev_b32 v7, 4, v3
    v_add_u32 v4, v4, v7
    v_add_u32 v4, {L_SC}, v4
    s_mov_b32 exec_hi, 0xff
    ds_write_b128 v4, v[20:23]
    s_mov_b32 exec_hi, -1
    s_waitcnt lgkmcnt(0)
    """)
    setflag(F_SCRDY)
    gettag()
    a("s_waitcnt vmcnt(0)")
    a("s_branch L_CH_LN")

    a.label("L_MSTAGE")
    tr_geom(100)
    a(f"""
    s_sub_u32 s72, s3, 10
    s_lshl_b32 s73, s72, 1
    v_xor_b32 v106, s73, v103
    v_lshlrev_b32 v106, 5, v106
    v_lshlrev_b32 v107, 7, v104
    v_add_u32 v107, v107, v105
    v_add_u32 v107, {L_MW}, v107
    v_xor_b32 v112, 32, v106
    v_add_u32 v112, v112, v107
    v_add_u32 v107, v106, v107
    v_and_b32 v108, 1, v0
    v_mul_u32_u24 v108, 320, v108
    v_lshlrev_b32 v109, 4, v100
    v_add_u32 v108, v108, v109
    v_add_u32 v108, {L_SC}, v108       ; A address
    ; store: 256*(g>>1) + 128u + 64*(g&1) + 4*(l&15)
    v_lshrrev_b32 v110, 1, v100
    v_lshlrev_b32 v110, 8, v110
    v_and_b32 v111, 1, v100
    v_lshlrev_b32 v111, 6, v111
    v_and_b32 v113, 15, v0
    v_lshlrev_b32 v113, 2, v113
    v_add3_u32 v110, v110, v111, v113
    s_lshl_b32 s6, s72, 7
    v_add_u32 v110, s6, v110
    """)
    spin(F_SCRDY, 1)
    for t in range(5): a(f"ds_read_b128 {rng(48+4*t,4)}, v108 offset:{64*t}")
    spin(F_MLAND, 1)
    for t in range(5):
        for hh in range(2):
            a(f"ds_read_b64_tr_b16 {rng(68+4*t+2*hh,2)}, v107 offset:{4096*t+512*hh}")
    for t in range(5):
        a(f"s_waitcnt lgkmcnt({2*(4-t) + 2*t})")
        c = '0' if t == 0 else 'v[96:99]'
        a(f"v_mfma_f32_16x16x32_bf16 v[96:99], {rng(48+4*t,4)}, {rng(68+4*t,4)}, {c}")
        for hh in range(2):
            a(f"ds_read_b64_tr_b16 {rng(120+4*t+2*hh,2)}, v112 offset:{4096*t+512*hh}")
    for t in range(5):
        a(f"s_waitcnt lgkmcnt({2*(4-t)})")
        c = '0' if t == 0 else 'v[140:143]'
        a(f"v_mfma_f32_16x16x32_bf16 v[140:143], {rng(48+4*t,4)}, {rng(120+4*t,4)}, {c}")
    a(f"""
    v_cndmask_b32 v96, v96, v140, s[48:49]
    v_cndmask_b32 v96, v96, v97, s[50:51]
    v_cndmask_b32 v96, v96, v141, s[52:53]
    """)
    tagit(['v96'])
    a(f"""
    buffer_store_dword v96, v110, s[36:39], s44 offen offset:{O_MP} sc1
    s_branch L_POST_M
    L_CH_LN:
    """)
    stamp(3)
    for b in range(2):
        for i in range(5): unpack(f"v{8+5*b+i}", f"v{24+10*b+2*i}", f"v{25+10*b+2*i}")
    for b in range(2):
        a(f"v_add_f32 v{44+b}, v{24+10*b}, v{25+10*b}")
        for i in range(2, 10): a(f"v_add_f32 v{44+b}, v{44+b}, v{24+10*b+i}")
    row16_sum(['v44', 'v45']); xrow16_sum(['v44', 'v45'], 50)
    for b in range(2): a(f"v_mul_f32 v{44+b}, {fl(1/640)}, v{44+b}")
    for b in range(2):
        for i in range(10): a(f"v_sub_f32 v{24+10*b+i}, v{24+10*b+i}, v{44+b}")
        a(f"v_mul_f32 v{46+b}, v{24+10*b}, v{24+10*b}")
        for i in range(1, 10): a(f"v_fma_f32 v{46+b}, v{24+10*b+i}, v{24+10*b+i}, v{46+b}")
    row16_sum(['v46', 'v47']); xrow16_sum(['v46', 'v47'], 50)
    for b in range(2): a(f"v_mul_f32 v{46+b}, {fl(1/640)}, v{46+b}")
    ln_finish('v44', 'v46', 50); ln_finish('v45', 'v47', 50)
    a(f"""
    v_cmp_eq_u32 vcc, 1, v2
    v_cndmask_b32 v44, v44, v45, vcc
    v_cndmask_b32 v46, v46, v47, vcc
    v_rcp_f32 v47, v46
    """)
    unpack('v18', 'v24', 'v25'); unpack('v19', 'v26', 'v27')
    for i in range(4): a(f"v_sub_f32 v{24+i}, v{24+i}, v44")
    bfround(vr(24, 4), 50)
    for i in range(4): fdiv(f"v{28+i}", f"v{24+i}", "v47", "v46", "v50")
    bfround(vr(28, 4), 50)
    a(f"""
    s_mov_b32 s68, -1
    s_mov_b32 s69, 0xff               ; lanes < 40
    s_mov_b32 s70, -1
    s_mov_b32 s71, 0xffff             ; lanes < 48
    s_mul_i32 s6, s46, 80
    v_lshlrev_b32 v4, 2, v3
    v_add_u32 v4, s6, v4               ; col
    v_lshlrev_b32 v5, 8, v2            ; 256*b
    v_mov_b32 v7, {OOB:#x}
    v_cmp_gt_u32 vcc, 40, v0
    """)
    for wh in range(2):
        a(f"""
        v_add_u32 v6, {640*wh}, v4
        v_lshrrev_b32 v15, 6, v6
        v_lshlrev_b32 v15, 16, v15
        v_and_b32 v6, 63, v6
        v_lshlrev_b32 v6, 2, v6
        v_add3_u32 v6, v6, v15, v5
        v_cndmask_b32 v{20+wh}, v7, v6, vcc
        """)
    a(f"""
    s_mov_b32 s84, 0
    s_mov_b32 s85, {2*REGION}
    s_mov_b32 s86, {4*REGION}
    s_mov_b32 s87, {6*REGION}
    """)
    spin(F_WQLAND, 1)
    stamp(4)
    def mp_loads(base):
        for wh in range(2):
            for ks in range(4):
                a(f"buffer_load_dwordx4 {rng(base+16*wh+4*ks,4)}, v{20+wh}, s[36:39], s{84+ks} offen offset:{O_MP} sc1")
    def mp_consume(base):
        for wh in range(2):
            B = base + 16*wh; D = 100 + 8*wh
            for h in range(2):
                pkadd(D+2*h, B+2*h, B+4+2*h); pkadd(D+4+2*h, B+8+2*h, B+12+2*h)
            for h in range(2): pkadd(D+2*h, D+2*h, D+4+2*h)
    poll2(mp_loads, 8, 32, 64, lambda b: pick(vr(b, 32), 4), mp_consume, itstamp=30, space=cfg.sp_m, mask='s[68:69]')
    stamp(5)
    bfround(vr(100, 4), 22); bfround(vr(108, 4), 22)
    for i in range(4): a(f"v_add_f32 v{108+i}, 1.0, v{108+i}")
    bfround(vr(108, 4), 22)
    for i in range(4): a(f"v_mul_f32 v{28+i}, v{28+i}, v{108+i}")
    bfround(vr(28, 4), 22)
    for i in range(4): a(f"v_add_f32 v{28+i}, v{28+i}, v{100+i}")
    a(f"""
    v_cvt_pk_bf16_f32 v24, v28, v29
    v_cvt_pk_bf16_f32 v25, v30, v31
    v_mul_u32_u24 v4, 160, v2
    v_lshlrev_b32 v5, 3, v3
    v_add_u32 v4, v4, v5
    v_add_u32 v4, {L_H}, v4
    s_mov_b32 exec_hi, 0xff
    ds_write_b64 v4, v[24:25]
    s_mov_b32 exec_hi, -1
    s_waitcnt lgkmcnt(0)
    """)
    setflag(F_HRDY)
    stamp(6)
    a("s_branch L_CH_QPOLL")

    a.label("L_QSTAGE")
    tr_geom(100)
    QA = [112, 113, 114, 115]; QT = [116, 117, 118, 119]
    a(f"""
    s_sub_u32 s72, s3, 9
    s_max_i32 s72, s72, 0              ; G: wave 8 -> 0, 10 -> 1, 11 -> 2
    s_lshl_b32 s73, s72, 7             ; 128G
    s_lshl_b32 s74, s72, 8
    s_add_u32 s74, s74, s44
    v_and_b32 v106, 1, v0
    v_mul_u32_u24 v106, 160, v106
    v_add_u32 v106, {L_H}, v106
    v_lshlrev_b32 v107, 4, v100
    v_add_u32 v107, v107, v106
    v_lshlrev_b32 v108, 3, v100
    v_add_u32 v108, v108, v106
    v_mul_u32_u24 v109, 384, v104
    v_add3_u32 v109, v109, v105, s73
    v_add_u32 v109, {L_W}, v109
    v_lshlrev_b32 v110, 2, v100
    v_add_u32 v110, v110, v101
    v_mul_u32_u24 v110, 384, v110
    v_add3_u32 v110, v110, v105, s73
    v_add_u32 v110, {L_W + 64*384}, v110
    v_lshrrev_b32 v111, 1, v101
    v_and_b32 v106, 2, v100
    v_or_b32 v111, v111, v106          ; sigma'
    v_lshlrev_b32 v120, 2, v0
    """)
    for q in range(4):
        a(f"""v_xor_b32 v{QA[q]}, {q}, v103
        v_lshlrev_b32 v{QA[q]}, 5, v{QA[q]}
        v_add_u32 v{QA[q]}, v{QA[q]}, v109
        v_xor_b32 v{QT[q]}, {q}, v111
        v_lshlrev_b32 v{QT[q]}, 5, v{QT[q]}
        v_add_u32 v{QT[q]}, v{QT[q]}, v110""")
    spin(F_FAST, 1)
    a("s_mov_b32 s75, s97")
    spin(F_WQLAND, 1)
    def qreads(q):
        base = 58 + 10*(q & 1)
        for t in range(2):
            for hh in range(2):
                a(f"ds_read_b64_tr_b16 {rng(base+4*t+2*hh,2)}, v{QA[q]} offset:{(32*t+4*hh)*384}")
        a(f"ds_read_b64_tr_b16 {rng(base+8,2)}, v{QT[q]} offset:0")
    qreads(0); qreads(1)
    spin(F_HRDY, 1)
    stamp(2)
    a("""ds_read_b128 v[48:51], v107
    ds_read_b128 v[52:55], v107 offset:64
    ds_read_b64 v[56:57], v108 offset:128
    s_waitcnt lgkmcnt(0)""")
    for q in range(4):
        base = 58 + 10*(q & 1)
        if q >= 2: a(f"s_waitcnt lgkmcnt({5 if q < 3 else 0})")
        a(f"v_mfma_f32_16x16x32_bf16 {rng(80+4*q,4)}, v[48:51], {rng(base,4)}, 0")
        a(f"v_mfma_f32_16x16x16_bf16 {rng(96+4*q,4)}, v[56:57], {rng(base+8,2)}, 0")
        a(f"v_mfma_f32_16x16x32_bf16 {rng(80+4*q,4)}, v[52:55], {rng(base+4,4)}, {rng(80+4*q,4)}")
        if q + 2 < 4: qreads(q+2)
    for b in range(2):
        a(f"""v_cndmask_b32 v{78+b}, v{80+b}, v{84+b}, s[48:49]
        v_cndmask_b32 v{76+b}, v{96+b}, v{100+b}, s[48:49]
        v_cndmask_b32 v{78+b}, v{78+b}, v{88+b}, s[50:51]
        v_cndmask_b32 v{76+b}, v{76+b}, v{104+b}, s[50:51]
        v_cndmask_b32 v{78+b}, v{78+b}, v{92+b}, s[52:53]
        v_cndmask_b32 v{76+b}, v{76+b}, v{108+b}, s[52:53]
        v_add_f32 v{78+b}, v{78+b}, v{76+b}""")
    tagit(['v78', 'v79'])
    if cfg.fast:
        a(f"""
        s_cmp_eq_u32 s75, 2
        s_cbranch_scc1 L_QS_F
        buffer_store_dword v78, v120, s[36:39], s74 offen offset:{O_QP} sc1
        buffer_store_dword v79, v120, s[36:39], s74 offen offset:{O_QP+768} sc1
        s_branch L_QS_D
        L_QS_F:
        buffer_store_dword v78, v120, s[36:39], s74 offen offset:{O_QP}
        buffer_store_dword v79, v120, s[36:39], s74 offen offset:{O_QP+768}
        L_QS_D:
        """)
    else:
        a(f"""
        buffer_store_dword v78, v120, s[36:39], s74 offen offset:{O_QP} sc1
        buffer_store_dword v79, v120, s[36:39], s74 offen offset:{O_QP+768} sc1
        """)
    addflag(F_QS)
    stamp(7)
    a(f"""
    s_branch L_PV
    L_CH_QPOLL:
    """)
    a(f"""
    s_lshl_b32 s6, s40, 6
    s_add_u32 s6, s6, s4
    s_lshl_b32 s84, s6, 13
    s_mul_i32 s6, s45, 768
    s_add_u32 s84, s84, s6
    v_lshlrev_b32 v4, 4, v0
    v_mov_b32 v7, {OOB:#x}
    v_cmp_gt_u32 vcc, 48, v0
    v_cndmask_b32 v4, v7, v4, vcc
    """)
    for i in range(1, 8): a(f"s_add_u32 s{84+i}, s{84+i-1}, {8*REGION}")
    def qp_loads(base):
        for i in range(8):
            a(f"buffer_load_dwordx4 {rng(base+4*i,4)}, v4, s[36:39], s{84+i} offen offset:{O_QP} sc1")
    def qp_consume(base):
        for h in range(2):
            for i in range(4): pkadd(8+4*i+2*h, base+8*i+2*h, base+8*i+4+2*h)
        for h in range(2):
            pkadd(8+2*h, 8+2*h, 12+2*h); pkadd(16+2*h, 16+2*h, 20+2*h)
        for h in range(2): pkadd(32 - 24 + 2*h, 8+2*h, 16+2*h)
    spin(F_QS, 3)
    stamp(7)
    poll2(qp_loads, 8, 96, 128, lambda b: pick(vr(b, 32), 4), qp_consume, itstamp=31, space=cfg.sp_q, mask='s[70:71]')
    stamp(9)
    a(f"""
    v_cvt_pk_bf16_f32 v24, v8, v9
    v_cvt_pk_bf16_f32 v25, v10, v11
    v_lshlrev_b32 v4, 3, v0
    v_add_u32 v4, {L_Q}, v4
    s_mov_b32 exec_hi, 0xffff
    ds_write_b64 v4, v[24:25]
    s_mov_b32 exec_hi, -1
    s_waitcnt lgkmcnt(0)
    """)
    setflag(F_QRDY)
    spin(F_SCNT, 8)
    stamp(10)
    a(f"""
    v_lshlrev_b32 v4, 4, v0
    v_add_u32 v4, {L_S}, v4
    ds_read_b128 v[32:35], v4
    s_waitcnt lgkmcnt(0)
    v_max3_f32 v36, v32, v33, v34
    v_max_f32 v36, v36, v35
    """)
    row16_sum(['v36'], 'v_max_f32'); xrow16_sum(['v36'], 50, 'v_max_f32')
    a(f"v_mul_f32 v36, {fl(LOG2E)}, v36")
    tagit(['v36'])
    a(f"s_mov_b32 s6, {fl(LOG2E)}")
    for i in range(4): a(f"v_fma_f32 v{32+i}, v{32+i}, s6, -v36")
    for i in range(4): a(f"v_exp_f32 v{32+i}, v{32+i}")
    a(f"""
    v_add_f32 v37, v32, v33
    v_add_f32 v38, v34, v35
    v_cvt_pk_bf16_f32 v24, v32, v33
    v_cvt_pk_bf16_f32 v25, v34, v35
    v_add_f32 v37, v37, v38
    v_lshlrev_b32 v4, 3, v0
    v_add_u32 v4, {L_P}, v4
    ds_write_b64 v4, v[24:25]
    """)
    row16_sum(['v37']); xrow16_sum(['v37'], 50)
    tagit(['v37'])
    spin(F_FAST, 1)
    a(f"""
    s_mov_b32 s75, s97
    v_mov_b32 v7, {OOB:#x}
    v_cmp_eq_u32 vcc, 0, v0
    v_cndmask_b32 v4, v7, 0, vcc
    """)
    a("s_waitcnt vmcnt(0)")
    pub_local(f"buffer_store_dwordx2 v[36:37], v4, s[36:39], s44 offen offset:{O_ML}")
    stamp(11)
    a("s_branch L_PV")

    a.label("L_POST")
    a("s_setprio 3")
    a("s_sub_u32 s54, s3, 10")
    a(f"""
    s_cmp_eq_u32 s54, 0
    s_cbranch_scc0 L_POST_W11
    s_mov_b32 s78, {R_P0}
    s_cmp_lt_u32 s5, 30
    s_cbranch_scc1 L_POST_R0
    s_mov_b32 s78, {R_P0X}
    L_POST_R0:
    v_mov_b32 v2, {EPOCH_OFF}
    buffer_load_dword v47, v2, s[36:39], 0 offen sc1
    s_getreg_b32 s76, hwreg(HW_REG_XCC_ID)
    s_and_b32 s76, s76, 15
    s_waitcnt vmcnt(0)
    v_add_u32 v47, 1, v47
    v_and_b32 v3, 0xff, v47
    v_or_b32 v4, 0x100, v3
    ds_write_b32 {VF}, v47 offset:{F_EPOCH}
    ds_write_b32 {VF}, v4 offset:{F_TAG}
    s_lshl_b32 s6, s76, 8
    v_or_b32 v3, s6, v3                ; (xcc<<8)|tag
    v_mov_b32 v4, {OOB:#x}
    v_cmp_eq_u32 vcc, 0, v0
    v_cndmask_b32 v4, v4, 0, vcc
    buffer_store_dword v3, v4, s[36:39], s44 offen offset:{O_XC} sc1
    s_branch L_POST_A
    L_POST_W11:
    s_mov_b32 s78, {R_P1}
    s_cmp_lt_u32 s5, 30
    s_cbranch_scc1 L_POST_R1
    s_mov_b32 s78, {R_P1X}
    L_POST_R1:
    s_getpc_b64 s[56:57]
    L_PCREF:
    s_sub_u32 s56, s56, L_PCREF-{KNAME}
    s_subb_u32 s57, s57, 0
    s_mov_b32 s58, L_CODE_END-{KNAME}
    s_mov_b32 s59, 0x00020000
    s_lshl_b32 s6, s5, 10
    v_lshlrev_b32 v2, 4, v0
    buffer_load_dwordx4 v[152:155], v2, s[56:59], s6 offen
    """)
    srd(56, 16, 7864320); srd(60, 20, 1966080); srd(64, 22, 1966080); srd(68, 24, 1966080)
    a(f"""
    s_mul_i32 s6, s4, 768
    s_lshl_b32 s7, s42, 8
    s_add_u32 s6, s6, s7
    s_mul_i32 s6, s6, 1280
    v_lshlrev_b32 v3, 16, v0
    v_mov_b32 v4, {OOB:#x}
    v_cmp_gt_u32 vcc, 5, v0
    v_cndmask_b32 v3, v4, v3, vcc
    buffer_load_dword v156, v3, s[56:59], s6 offen
    s_mul_i32 s6, s43, {64*3072}
    buffer_load_dword v157, v3, s[60:63], s6 offen
    buffer_load_dword v158, v3, s[64:67], s6 offen
    s_mul_i32 s7, s4, 3
    s_add_u32 s7, s7, s42
    s_mul_i32 s6, s7, {64*1280}
    buffer_load_dword v159, v3, s[68:71], s6 offen
    L_POST_A:
    """)
    stamp(1)
    gettag()
    a(f"""
    s_cmp_eq_u32 s78, {R_P0X}
    s_cbranch_scc1 L_POST_XC
    s_cmp_eq_u32 s78, {R_P1X}
    s_cbranch_scc1 L_POST_Q
    """)
    a("s_branch L_MSTAGE")
    a.label("L_POST_M")
    a(f"""
    s_cmp_eq_u32 s78, {R_P0}
    s_cbranch_scc0 L_POST_ADDR
    L_POST_XC:
    """)
    a(f"""
    v_lshlrev_b32 v48, 16, v0
    s_lshl_b32 s6, s4, 13
    v_add_u32 v48, s6, v48
    v_mov_b32 v49, {OOB:#x}
    v_cmp_gt_u32 vcc, 32, v0
    v_cndmask_b32 v48, v49, v48, vcc
    s_mov_b32 s76, -1
    s_mov_b32 s77, 0
    """)
    def xc_loads():
        a(f"buffer_load_dword v50, v48, s[36:39], 0 offen offset:{O_XC} sc1")
    poll(xc_loads, ['v50'], mask='s[76:77]')
    a(f"""
    s_getreg_b32 s6, hwreg(HW_REG_XCC_ID)
    s_and_b32 s6, s6, 15
    v_lshrrev_b32 v50, 8, v50
    v_cmp_ne_u32 vcc, s6, v50
    s_and_b64 vcc, vcc, s[76:77]
    s_cselect_b32 s6, 1, 2
    v_mov_b32 {VT}, s6
    ds_write_b32 {VF}, {VT} offset:{F_FAST}
    """)
    stamp(4)
    a(f"""
    s_cmp_eq_u32 s78, {R_P0X}
    s_cbranch_scc1 L_POST_Q
    L_POST_ADDR:
    """)
    a(f"""
    v_lshrrev_b32 v1, 4, v0            ; g
    v_and_b32 v2, 15, v0               ; c
    v_lshlrev_b32 v3, 4, v2            ; 16c
    s_lshl_b32 s55, s54, 8             ; 256*b
    v_lshl_add_u32 v4, v2, 2, v1       ; column 4c+g
    v_lshlrev_b32 v4, 1, v4
    s_lshl_b32 s6, s54, 7
    v_add_u32 v9, s6, v4
    v_lshlrev_b32 v10, 1, v0
    v_add_u32 v10, s6, v10
    v_add_u32 v10, {L_H2}, v10
    s_add_u32 s6, s54, 30
    s_lshl_b32 s6, s6, 3
    s_add_u32 s6, s6, s4
    s_lshl_b32 s6, s6, 13
    s_lshl_b32 s7, s43, 8
    s_add_u32 s6, s6, s7
    v_lshlrev_b32 v22, 2, v0
    v_add_u32 v22, s6, v22
    s_mul_i32 s6, s42, 80
    s_add_u32 s6, s6, s4
    s_lshl_b32 s6, s6, 13
    s_add_u32 s7, s6, s55
    v_mov_b32 v7, {OOB:#x}
    """)
    for i in range(3):
        a(f"""
        v_add_u32 v5, {4*i}, v1
        v_cmp_gt_u32 vcc, 10, v5
        v_lshlrev_b32 v5, 16, v5
        v_add3_u32 v5, v5, v3, s7
        v_cndmask_b32 v{23+i}, v7, v5, vcc
        """)
    a(f"""
    s_lshl_b32 s6, s42, 8
    v_lshlrev_b32 v5, 2, v0
    v_add_u32 v5, s6, v5               ; rho
    v_mul_u32_u24 v6, 342, v5
    v_lshrrev_b32 v6, 16, v6           ; rho/192
    v_mul_u32_u24 v7, 192, v6
    v_sub_u32 v5, v5, v7
    v_lshlrev_b32 v5, 2, v5
    v_lshlrev_b32 v6, 3, v6
    s_lshl_b32 s6, s54, 2
    v_add_u32 v6, s6, v6
    v_lshlrev_b32 v6, 3, v6
    v_add_u32 v6, s4, v6
    v_lshlrev_b32 v26, 13, v6
    v_add_u32 v27, v26, v5             ; O address
    v_lshlrev_b32 v28, 3, v0
    s_lshl_b32 s6, s54, 9
    s_add_u32 s6, s6, {L_AO}
    v_add_u32 v28, s6, v28
    s_mov_b32 s84, 0
    s_mov_b32 s85, {8*REGION}
    s_mov_b32 s86, {16*REGION}
    s_mov_b32 s87, {24*REGION}
    s_mov_b32 s88, {O_GP}
    s_mov_b32 s90, -1
    s_mov_b32 s91, 0
    L_POST_Q:
    s_branch L_QSTAGE
    """)

    a.label("L_PV")
    tr_geom(100)
    a(f"""
    s_and_b32 s6, s3, 3
    v_xor_b32 v106, s6, v103
    v_lshlrev_b32 v106, 5, v106
    s_lshr_b32 s6, s3, 2
    s_lshl_b32 s6, s6, 7
    v_mul_u32_u24 v107, 384, v104
    v_add3_u32 v107, v107, v105, v106
    v_add_u32 v107, s6, v107
    v_add_u32 v108, 49152, v107
    v_lshlrev_b32 v109, 4, v100
    v_add_u32 v109, {L_P}, v109
    s_lshl_b32 s6, s3, 6
    v_lshlrev_b32 v110, 2, v0
    v_add_u32 v110, s6, v110
    v_mov_b32 v111, {OOB:#x}
    v_cmp_gt_u32 vcc, 16, v0
    v_cndmask_b32 v110, v111, v110, vcc
    s_waitcnt lgkmcnt(0)
    s_barrier
    """)
    stamp(12)
    a(f"ds_read_b64 v[164:165], {VF} offset:{F_TAG}")
    bufs = [48, 52, 56, 60]
    def vread(t):
        ad = 'v107' if t < 4 else 'v108'
        tt = t % 4
        base = bufs[t % 4]
        a(f"ds_read_b128 {rng(64+4*t,4)}, v109 offset:{64*t}")
        a(f"ds_read_b64_tr_b16 {rng(base,2)}, {ad} offset:{12288*tt}")
        a(f"ds_read_b64_tr_b16 {rng(base+2,2)}, {ad} offset:{12288*tt+1536}")
    for t in range(4): vread(t)
    for t in range(8):
        rem = min(7, t + 3) - t
        a(f"s_waitcnt lgkmcnt({3*rem})")
        c = '0' if t == 0 else 'v[96:99]'
        a(f"v_mfma_f32_16x16x32_bf16 v[96:99], {rng(64+4*t,4)}, {rng(bufs[t%4],4)}, {c}")
        if t + 4 < 8: vread(t + 4)
        if t == 1:
            a(f"""v_readfirstlane_b32 s97, v164
            v_readfirstlane_b32 s75, v165
            v_and_b32 {VTAG}, 0xff, v164
            v_mov_b32 {VM8}, 0xff
            s_and_b32 s95, s97, 0xff""")
    tagit(['v96'])
    pub_local(f"buffer_store_dword v96, v110, s[36:39], s44 offen offset:{O_OP}")
    stamp(13)
    a(f"""
    s_cmp_eq_u32 s78, {R_K}
    s_cbranch_scc1 L_K2
    s_cmp_eq_u32 s78, {R_P0}
    s_cbranch_scc1 L_POST2
    s_cmp_eq_u32 s78, {R_P1}
    s_cbranch_scc1 L_POST2
    s_cmp_eq_u32 s78, {R_KX}
    s_cbranch_scc1 L_HUB
    s_cmp_eq_u32 s78, {R_LDX}
    s_cbranch_scc1 L_HUB
    s_cmp_eq_u32 s78, {R_CHX}
    s_cbranch_scc1 L_HUB
    s_branch L_FIN
    """)
    a.label("L_K2")
    a(f"""
    s_mul_i32 s88, s4, 3
    s_add_u32 s88, s88, s42            ; f
    s_movk_i32 s89, 0xc00
    s_cmp_eq_u32 s3, 6
    s_cselect_b32 s89, 1280, s89
    s_cselect_b32 s90, s88, s43
    s_cselect_b32 s91, s43, s88
    s_lshl_b32 s90, s90, 6
    s_mul_i32 s90, s90, s89
    s_lshl_b32 s91, s91, 7
    s_add_u32 s90, s90, s91            ; soffset
    s_cmp_eq_u32 s3, 4
    s_cselect_b32 s68, s20, s22
    s_cselect_b32 s69, s21, s23
    s_cmp_eq_u32 s3, 6
    s_cselect_b32 s68, s24, s68
    s_cselect_b32 s69, s25, s69
    s_mov_b32 s70, 1966080
    s_mov_b32 s71, 0x00020000
    s_sub_u32 s91, s3, 4
    s_lshl_b32 s91, s91, 13
    s_add_u32 s91, s91, {L_MW}
    """)
    off128('v72', 'v73', 's89', 1)
    a(f"""
    s_lshl_b32 s89, s89, 3             ; 8 rows
    s_and_b32 s6, s3, 1
    s_lshl_b32 s7, s6, 1
    v_xor_b32 v106, s7, v103
    v_lshlrev_b32 v106, 5, v106
    v_lshlrev_b32 v107, 7, v104
    v_add_u32 v107, v107, v105             ; (8g+r)*128 + 8c
    v_xor_b32 v105, 32, v106
    v_add_u32 v105, v105, v107
    v_add_u32 v106, v106, v107
    s_and_b32 s7, s3, 3
    v_xor_b32 v109, s7, v103
    v_lshlrev_b32 v109, 5, v109
    v_add_u32 v107, v109, v107
    v_and_b32 v108, 1, v0
    v_lshrrev_b32 v110, 1, v100
    v_lshlrev_b32 v110, 8, v110
    v_and_b32 v111, 1, v100
    v_lshlrev_b32 v111, 6, v111
    v_and_b32 v113, 15, v0
    v_lshlrev_b32 v113, 2, v113
    v_add3_u32 v110, v110, v111, v113
    s_lshl_b32 s6, s6, 7
    v_add_u32 v110, s6, v110
    s_lshl_b32 s7, s7, 6
    s_lshr_b32 s6, s3, 2
    s_lshl_b32 s6, s6, 9
    s_add_u32 s7, s7, s6
    v_lshlrev_b32 v111, 8, v100
    v_add3_u32 v115, v111, v113, s7
    v_mov_b32 v111, {OOB:#x}
    v_cmp_gt_u32 vcc, 32, v0
    v_cndmask_b32 v115, v111, v115, vcc
    v_lshlrev_b32 v113, 4, v100            ; 16g
    v_lshlrev_b32 v112, 9, v108
    v_add_u32 v112, v112, v113
    v_add_u32 v112, {L_AO}, v112
    v_add_u32 v114, {L_W}, v106
    v_add_u32 v116, {L_W}, v105
    s_waitcnt vmcnt(1)
    s_barrier
    """)
    stamp(14)
    a(f"""
    s_cmp_gt_u32 s3, 1
    s_cbranch_scc1 L_K_NOWO
    """)
    def wread(t, base, ad):
        a(f"ds_read_b64_tr_b16 {rng(base,2)}, {ad} offset:{4096*t}")
        a(f"ds_read_b64_tr_b16 {rng(base+2,2)}, {ad} offset:{4096*t+512}")
    bA = [48, 52, 56]; bB = [120, 124, 128]
    def woread(t):
        a(f"ds_read_b128 {rng(64+4*t,4)}, v112 offset:{64*t}")
        wread(t, bA[t % 3], 'v114'); wread(t, bB[t % 3], 'v116')
    for t in range(3): woread(t)
    for t in range(8):
        rem = min(7, t + 2) - t
        a(f"s_waitcnt lgkmcnt({5*rem})")
        c0 = '0' if t == 0 else 'v[96:99]'; c1 = '0' if t == 0 else 'v[140:143]'
        a(f"v_mfma_f32_16x16x32_bf16 v[96:99], {rng(64+4*t,4)}, {rng(bA[t%3],4)}, {c0}")
        a(f"v_mfma_f32_16x16x32_bf16 v[140:143], {rng(64+4*t,4)}, {rng(bB[t%3],4)}, {c1}")
        if t + 3 < 8: woread(t + 3)
    a(f"""
    v_cndmask_b32 v96, v96, v140, s[48:49]
    v_cndmask_b32 v96, v96, v97, s[50:51]
    v_cndmask_b32 v96, v96, v141, s[52:53]
    v_bfi_b32 v96, {VM8}, {VTAG}, v96
    buffer_store_dword v96, v110, s[36:39], s44 offen offset:{O_P1} sc1
    s_branch L_K_GU
    L_K_NOWO:
    s_cmp_lt_u32 s3, 4
    s_cbranch_scc1 L_K_GU
    s_cmp_eq_u32 s3, 7
    s_cbranch_scc1 L_K_GU
    """)
    for i in range(8):
        a(f"""s_add_u32 m0, s91, {1024*i}
        s_nop 0
        buffer_load_dwordx4 v{72 + (i & 1)}, s[68:71], s90 offen {NT} lds""")
        if i < 7: a("s_add_u32 s90, s90, s89")
    a("s_waitcnt vmcnt(0)")
    a.label("L_K_GU")
    stamp(15)
    a(f"""
    s_lshr_b32 s6, s3, 2
    s_lshl_b32 s7, s6, 13
    s_add_u32 s7, s7, {L_MW}
    v_add_u32 v114, s7, v107
    v_lshlrev_b32 v112, 7, v108
    v_add_u32 v112, v112, v113
    v_add_u32 v117, {L_ACT}, v112
    v_add_u32 v112, {L_H2}, v112
    s_add_u32 s6, s44, {O_GP}
    s_barrier
    """)
    stamp(16)
    a(f"""
    ds_read_b128 v[64:67], v112
    ds_read_b128 v[68:71], v112 offset:64
    """)
    wread(0, 48, 'v114'); wread(1, 52, 'v114')
    a(f"""
    s_waitcnt lgkmcnt(2)
    v_mfma_f32_16x16x32_bf16 v[96:99], v[64:67], v[48:51], 0
    s_waitcnt lgkmcnt(0)
    v_mfma_f32_16x16x32_bf16 v[96:99], v[68:71], v[52:55], v[96:99]
    v_cndmask_b32 v96, v96, v97, s[48:49]
    v_bfi_b32 v96, {VM8}, {VTAG}, v96
    """)
    pub_local("buffer_store_dword v96, v115, s[36:39], s6 offen")
    stamp(17)
    a(f"""
    s_cmp_gt_u32 s3, 1
    s_cbranch_scc1 L_FIN
    v_add_u32 v114, {L_MW + 16384}, v106
    v_add_u32 v116, {L_MW + 16384}, v105
    """)
    wread(0, 48, 'v114'); wread(1, 52, 'v114'); wread(0, 120, 'v116'); wread(1, 124, 'v116')
    a("s_barrier")
    stamp(18)
    a(f"""
    ds_read_b128 v[64:67], v117
    ds_read_b128 v[68:71], v117 offset:64
    s_waitcnt lgkmcnt(1)
    v_mfma_f32_16x16x32_bf16 v[96:99], v[64:67], v[48:51], 0
    v_mfma_f32_16x16x32_bf16 v[140:143], v[64:67], v[120:123], 0
    s_waitcnt lgkmcnt(0)
    v_mfma_f32_16x16x32_bf16 v[96:99], v[68:71], v[52:55], v[96:99]
    v_mfma_f32_16x16x32_bf16 v[140:143], v[68:71], v[124:127], v[140:143]
    v_cndmask_b32 v96, v96, v140, s[48:49]
    v_cndmask_b32 v96, v96, v97, s[50:51]
    v_cndmask_b32 v96, v96, v141, s[52:53]
    v_bfi_b32 v96, {VM8}, {VTAG}, v96
    buffer_store_dword v96, v110, s[36:39], s44 offen offset:{O_P2} sc1
    """)
    stamp(19)
    a("s_branch L_FIN")

    a.label("L_POST2")
    def a_loads(base):
        for s in range(4):
            a(f"buffer_load_dwordx4 {rng(base+4*s,4)}, v27, s[36:39], s{84+s} offen offset:{O_OP} sc1")
        for s in range(4):
            a(f"buffer_load_dwordx2 {rng(base+16+2*s,2)}, v26, s[36:39], s{84+s} offen offset:{O_ML} sc1")
    def a_consume(B):
        M = B + 16
        a(f"""
        v_max3_f32 v48, v{M}, v{M+2}, v{M+4}
        v_max_f32 v48, v48, v{M+6}
        """)
        for s in range(4): a(f"v_sub_f32 v{50+s}, v{M+2*s}, v48")
        for s in range(4): a(f"v_exp_f32 v{50+s}, v{50+s}")
        a(f"""
        v_mul_f32 v49, v50, v{M+1}
        v_mul_f32 v56, v50, v{B}
        v_mul_f32 v57, v50, v{B+1}
        v_fma_f32 v49, v51, v{M+3}, v49
        v_mul_f32 v58, v50, v{B+2}
        v_mul_f32 v59, v50, v{B+3}
        v_fma_f32 v49, v52, v{M+5}, v49
        """)
        for i in range(4): a(f"v_fma_f32 v{56+i}, v51, v{B+4+i}, v{56+i}")
        a(f"v_fma_f32 v49, v53, v{M+7}, v49")
        for i in range(4): a(f"v_fma_f32 v{56+i}, v52, v{B+8+i}, v{56+i}")
        a("v_rcp_f32 v49, v49")
        for i in range(4): a(f"v_fma_f32 v{56+i}, v53, v{B+12+i}, v{56+i}")
    poll2(a_loads, 8, 64, 88, lambda b: pick(vr(b, 16), 4) + pick(vr(b+16, 8), 2), a_consume, itstamp=31, space=cfg.sp_l)
    stamp(14)
    for i in range(4): a(f"v_mul_f32 v{56+i}, v{56+i}, v49")
    a(f"""
    v_cvt_pk_bf16_f32 v60, v56, v57
    v_cvt_pk_bf16_f32 v61, v58, v59
    ds_write_b64 v28, v[60:61]
    s_waitcnt lgkmcnt(0)
    s_barrier
    """)
    stamp(15)
    def h2_loads():
        a(f"buffer_load_dword v64, v22, s[36:39], 0 offen offset:{O_H2} sc1")
    poll(h2_loads, ['v64'], itstamp=33)
    stamp(17)
    a(f"""
    v_lshrrev_b32 v64, 16, v64
    ds_write_b16 v10, v64
    s_waitcnt lgkmcnt(0)
    s_barrier
    """)
    stamp(18)
    def gp_loads(base):
        for mat in range(2):
            for i in range(3):
                a(f"buffer_load_dwordx4 {rng(base+12*mat+4*i,4)}, v{23+i}, s[36:39], s88 offen offset:{512*mat} sc1")
    def gp_consume(base):
        for mat in range(2):
            B = base + 12*mat; D = 64 + 4*mat
            for h in range(2): pkadd(D+2*h, B+2*h, B+4+2*h)
            for h in range(2): pkadd(D+2*h, D+2*h, B+8+2*h)
    poll2(gp_loads, 6, 80, 112, lambda b: pick(vr(b, 8) + vr(b+12, 8), 4), gp_consume, itstamp=34, space=cfg.sp_l,
          extra=lambda b: (pick(vr(b+8, 4) + vr(b+20, 4), 4), 's[90:91]'))
    stamp(19)
    transred(64); transred(68)
    K0 = 0.7978845608028654; K1 = 0.044715
    a(f"""
    v_cvt_pk_bf16_f32 v72, v64, v68
    v_lshlrev_b32 v64, 16, v72         ; gate
    v_and_b32 v68, 0xffff0000, v72     ; up
    v_mul_f32 v72, v64, v64
    v_mul_f32 v72, {fl(K1)}, v72
    v_add_f32 v72, 1.0, v72
    v_mul_f32 v72, v72, v64
    v_mul_f32 v72, {fl(-2*K0*LOG2E)}, v72
    v_exp_f32 v72, v72
    v_add_f32 v72, 1.0, v72
    v_rcp_f32 v72, v72
    v_mul_f32 v64, v64, v72
    v_cvt_pk_bf16_f32 v64, v64, v64
    v_lshlrev_b32 v64, 16, v64
    v_mul_f32 v64, v64, v68
    v_cvt_pk_bf16_f32 v64, v64, v64
    v_add_u32 v73, {L_ACT}, v9
    ds_write_b16 v73, v64
    s_waitcnt lgkmcnt(0)
    s_barrier
    """)
    stamp(20)
    a("s_branch L_FIN")

    a.label("L_HUB")
    srd(56, 8, 2560)
    srd(60, 30, 2560)
    a(f"""
    s_setprio 3
    s_sub_u32 s54, s5, 30              ; b
    v_lshrrev_b32 v1, 4, v0            ; g
    v_and_b32 v2, 15, v0               ; c
    v_lshlrev_b32 v3, 4, v2            ; 16c
    s_lshl_b32 s55, s54, 8             ; 256*b
    v_lshl_add_u32 v4, v2, 2, v1       ; column 4c+g
    s_lshl_b32 s6, s3, 8
    v_lshlrev_b32 v9, 2, v4
    v_add_u32 v9, s6, v9
    v_lshlrev_b32 v4, 1, v4
    s_mul_i32 s6, s54, 1280
    s_lshl_b32 s7, s3, 7
    s_add_u32 s6, s6, s7
    v_add_u32 v11, s6, v4
    buffer_load_ushort v8, v11, s[56:59], 0 offen
    buffer_load_ushort v10, v11, s[60:63], 0 offen
    """)
    for qi, cb0 in enumerate((20, 30, 40, 50)):
        odd = 1 if cb0 >= 30 else 0
        a(f"""
        s_add_u32 s6, s3, {cb0 - 30*odd}
        s_lshl_b32 s6, s6, 3
        s_add_u32 s6, s6, {odd}
        s_lshl_b32 s6, s6, 13
        s_add_u32 s6, s6, s55
        v_lshlrev_b32 v5, 14, v1
        v_add3_u32 v{12+qi}, v5, v3, s6
        """)
    def mod_loads():
        for qi in range(4):
            a(f"buffer_load_dwordx4 {rng(48+4*qi,4)}, v{12+qi}, s[36:39], 0 offen offset:{O_MP} sc1")
    for i in range(6):
        a(f"""
        v_add_u32 v5, {4*i}, v1
        v_mul_u32_u24 v6, 86, v5
        v_lshrrev_b32 v6, 8, v6
        v_mul_u32_u24 v7, 3, v6
        v_sub_u32 v5, v5, v7
        v_mul_u32_u24 v5, 10, v5
        v_add_u32 v5, s3, v5
        v_lshlrev_b32 v5, 3, v5
        v_add_u32 v5, v5, v6
        v_lshlrev_b32 v5, 13, v5
        v_add3_u32 v{16+i}, v5, v3, s55
        """)
    a(f"""
    v_lshrrev_b32 v5, 5, v0
    v_lshlrev_b32 v5, 2, v5
    s_lshl_b32 s6, s3, 3
    s_add_u32 s6, s6, {L_S}
    v_add_u32 v29, s6, v5
    v_lshlrev_b32 v28, 3, v2
    v_add_u32 v28, {L_S}, v28
    s_mov_b32 s92, 0x03ff03ff
    s_mov_b32 s93, 0x03ff03ff
    """)
    poll(mod_loads, pick(vr(48, 16), 4), itstamp=30)
    for qi in range(4): transred(48 + 4*qi)
    a("""v_mov_b32 v32, v48
    v_mov_b32 v33, v52
    v_mov_b32 v34, v56
    v_mov_b32 v35, v60""")
    bfround(vr(32, 4), 40)
    a("v_add_f32 v34, 1.0, v34")
    bfround(['v34'], 40)
    a("v_lshlrev_b32 v30, 16, v8")
    stamp(14)
    PA, PB = 112, 136
    def p_loads(off):
        def f(base):
            for i in range(6):
                a(f"buffer_load_dwordx4 {rng(base+4*i,4)}, v{16+i}, s[36:39], 0 offen offset:{off} sc1")
        return f
    def p_chk(base): return pick(vr(base, 24), 4)
    def p_consume(base):
        for h in range(2):
            pkadd(64+2*h, base+2*h, base+4+2*h)
            pkadd(68+2*h, base+8+2*h, base+12+2*h)
            pkadd(72+2*h, base+16+2*h, base+20+2*h)
        for h in range(2): pkadd(64+2*h, 64+2*h, 68+2*h)
        for h in range(2): pkadd(64+2*h, 64+2*h, 72+2*h)
        transred(64)
    save = cfg.pipe; cfg.pipe = cfg.pipe_r
    poll2(p_loads(O_P1), 6, PA, PB, p_chk, p_consume, itstamp=32, space=cfg.sp_r)
    cfg.pipe = save
    stamp(16)
    a(f"""
    v_cvt_pk_bf16_f32 v64, v64, v64
    v_lshlrev_b32 v64, 16, v64
    v_mul_f32 v64, v32, v64
    v_cvt_pk_bf16_f32 v64, v64, v64
    v_lshlrev_b32 v64, 16, v64
    v_add_f32 v30, v30, v64
    v_cvt_pk_bf16_f32 v30, v30, v30
    v_lshlrev_b32 v30, 16, v30         ; x1
    v_mul_f32 v65, v30, v30
    v_mov_b32 v64, v30
    """)
    row16_sum(['v64', 'v65'])
    a(f"""
    v_permlane32_swap_b32 v64, v65
    v_add_f32 v64, v64, v65
    v_mov_b32 v65, v64
    v_permlane16_swap_b32 v64, v65
    v_add_f32 v64, v64, v65
    s_mov_b32 exec_lo, 1
    s_mov_b32 exec_hi, 1
    ds_write_b32 v29, v64
    s_mov_b64 exec, -1
    s_waitcnt lgkmcnt(0)
    s_barrier
    ds_read_b64 v[68:69], v28
    s_waitcnt lgkmcnt(0)
    v_cndmask_b32 v68, 0, v68, s[92:93]
    v_cndmask_b32 v69, 0, v69, s[92:93]
    """)
    stamp(17)
    row16_sum(['v68', 'v69'])
    a(f"""
    v_mul_f32 v68, {fl(1/640)}, v68
    v_mul_f32 v69, {fl(1/640)}, v69
    v_fma_f32 v69, -v68, v68, v69
    v_max_f32 v69, 0, v69
    """)
    ln_finish('v68', 'v69', 70)
    a(f"""
    v_rcp_f32 v71, v69
    v_sub_f32 v64, v30, v68
    v_cvt_pk_bf16_f32 v64, v64, v64
    v_lshlrev_b32 v64, 16, v64
    """)
    fdiv('v72', 'v64', 'v71', 'v69', 'v70')
    a(f"""
    v_cvt_pk_bf16_f32 v72, v72, v72
    v_lshlrev_b32 v72, 16, v72
    v_mul_f32 v72, v72, v34
    v_cvt_pk_bf16_f32 v72, v72, v72
    v_lshlrev_b32 v72, 16, v72
    v_add_f32 v72, v72, v33
    v_cvt_pk_bf16_f32 v72, v72, v72
    v_lshlrev_b32 v72, 16, v72
    v_bfi_b32 v72, {VM8}, {VTAG}, v72
    """)
    pub_local(f"buffer_store_dword v72, v9, s[36:39], s44 offen offset:{O_H2}")
    stamp(18)
    a(f"""
    s_and_b32 s6, s3, 7
    s_cmp_eq_u32 s6, s4
    s_cbranch_scc0 L_FIN
    """)
    cfg.pipe = cfg.pipe_r
    a("s_waitcnt vmcnt(0)")
    poll2(p_loads(O_P2), 6, PA, PB, p_chk, p_consume, itstamp=35, space=cfg.sp_r)
    cfg.pipe = save
    stamp(21)
    a(f"""
    v_cvt_pk_bf16_f32 v64, v64, v64
    v_lshlrev_b32 v64, 16, v64
    v_mul_f32 v64, v35, v64
    v_cvt_pk_bf16_f32 v64, v64, v64
    v_lshlrev_b32 v64, 16, v64
    v_add_f32 v64, v30, v64
    v_cvt_pk_bf16_f32 v64, v64, v64
    buffer_store_short v64, v11, s[60:63], 0 offen
    s_or_b32 s6, s54, s3
    s_cmp_eq_u32 s6, 0
    s_cbranch_scc0 L_NOEPOCH
    ds_read_b32 v47, {VF} offset:{F_EPOCH}
    v_mov_b32 v2, {EPOCH_OFF}
    s_waitcnt lgkmcnt(0)
    s_mov_b64 exec, 1
    buffer_store_dword v47, v2, s[36:39], 0 offen sc1
    s_mov_b64 exec, -1
    L_NOEPOCH:
    """)
    stamp(22)
    a.label("L_FIN")
    prof_out()
    a.label("L_END")
    a("s_endpgm")
    a.label("L_CODE_END")
    body = a.text()
    hdr = open('adaLN_cond__sliding_block_cached__geglu_ffn__decode.s.ref').read().split('; Override')[0]
    return f"""{hdr}; Generated by gen/gen3.py (hand-designed schedule; see that file for the structure).
; @launch grid=(256,1,1) block=(768,1,1) lds={LDS_BYTES}
.amdgcn_target "amdgcn-amd-amdhsa--gfx950"
.text
.globl {KNAME}
.p2align 8
.type {KNAME},@function
{KNAME}:
{body}
.section .rodata,"a"
.p2align 6
.amdhsa_kernel {KNAME}
  .amdhsa_next_free_vgpr 168
  .amdhsa_next_free_sgpr 102
  .amdhsa_accum_offset 168
  .amdhsa_group_segment_fixed_size 0
  .amdhsa_kernarg_size 112
  .amdhsa_user_sgpr_count 2
  .amdhsa_user_sgpr_kernarg_segment_ptr 1
  .amdhsa_system_sgpr_workgroup_id_x 1
  .amdhsa_float_denorm_mode_32 3
.end_amdhsa_kernel
"""

if __name__ == "__main__":
    class C(Cfg): pass
    for arg in sys.argv[2:]:
        k, v = arg.split('=')
        setattr(C, k, int(v))
    open(sys.argv[1], 'w').write(gen(C))
```

```python
import sys, struct
from asmlib import Asm

KNAME = "adaLN_cond__sliding_block_cached__geglu_ffn__decode_kernel"
REGION = 8192
O_MP, O_QP, O_OP, O_ML, O_XC, O_ST, O_P1, O_P2, O_GP = 0, 512, 2048, 2816, 2880, 2944, 3072, 3584, 4096
O_H2 = 3072
EPOCH_OFF = 256 * REGION
WS_BYTES = 256 * REGION + 128
PROF_OFF = 4 << 20
L_V = 0
L_W = 98304
L_SC = 131072
L_H = 131712
L_Q = 132032
L_S = 132416
L_P = 133440
L_AO = 133952
L_H2 = 134976
L_ACT = 135232
L_FLG = 135488
L_MW = 135680
LDS_BYTES = L_MW + 24576
F_KGO, F_MLAND, F_WQLAND, F_SCRDY, F_QRDY, F_SCNT, F_TAG, F_FAST, F_HRDY, F_QS, F_EPOCH, F_PRDY, F_P1ACK = [4 * i for i in range(13)]
OOB = 0x80000000
LOG2E = 1.4426950408889634
SCALE = 192 ** -0.5
def f2u(x): return struct.unpack('<I', struct.pack('<f', x))[0]
def fl(x): return hex(f2u(x))
VF, VT, VM8, VTAG, VC, VC2, VP1, VP0 = 'v160', 'v161', 'v162', 'v163', 'v164', 'v165', 'v166', 'v167'
R_K, R_KX, R_LD, R_CH, R_P0, R_P0X, R_P1, R_P1X, R_LDX, R_CHX = 1, 2, 3, 4, 5, 6, 7, 8, 9, 10

class Cfg:
    prof = 0
    WL = 32
    WK = 3
    WV = 4
    SIDX = 20
    spin_max = 1 << 20
    poll_max = 1 << 15
    poll_sleep = 0
    fast = 1
    nt = 1
    pipe = 0
    pipe_r = 0
    pipe_c = 0
    dm = 0
    dq = 0
    dg = 0
    dh = 0
    ffn_ack = 1
    prea = 1
    pf_top = 1
    npiece = 1
    pf_chunks = 2
    sp_m = 16
    sp_q = 16
    sp_l = 1
    sp_r = 2
    chk4 = 0

def gen(cfg=Cfg):
    a = Asm()
    NT = 'nt' if cfg.nt else ''
    def stamp(i):
        if cfg.prof == 1 or (cfg.prof == 2 and i in (0, 12, 22)):
            a(f"""
            s_memrealtime s[98:99]
            s_waitcnt lgkmcnt(0)
            v_writelane_b32 {VP0}, s98, {i}
            """)
    def prof_out():
        if cfg.prof:
            a(f"""
            s_mul_i32 s6, s2, 12
            s_add_u32 s6, s6, s3
            s_lshl_b32 s6, s6, 8
            s_add_u32 s6, s6, {PROF_OFF}
            v_lshlrev_b32 {VP1}, 2, v0
            v_add_u32 {VP1}, s6, {VP1}
            s_mov_b32 s38, 0x7fffffff
            buffer_store_dword {VP0}, {VP1}, s[36:39], 0 offen
            s_mov_b32 s38, {WS_BYTES}
            """)
    def spin(flag, target):
        L = a.new('SP'); D = a.new('SD')
        a(f"""
        s_mov_b32 s96, 0
        {L}:
        ds_read_b32 {VT}, {VF} offset:{flag}
        s_add_u32 s96, s96, 1
        s_waitcnt lgkmcnt(0)
        v_readfirstlane_b32 s97, {VT}
        s_cmp_ge_u32 s97, {target}
        s_cbranch_scc1 {D}
        s_cmp_gt_u32 s96, {cfg.spin_max}
        s_cbranch_scc1 {D}
        s_sleep 1
        s_branch {L}
        {D}:
        """)
    def setflag(flag, val=1):
        a(f"""
        v_mov_b32 {VT}, {val}
        ds_write_b32 {VF}, {VT} offset:{flag}
        """)
    def addflag(flag):
        a(f"""
        v_mov_b32 {VT}, 1
        s_mov_b64 exec, 1
        ds_add_u32 {VF}, {VT} offset:{flag}
        s_mov_b64 exec, -1
        """)
    def pick(regs, step):
        regs = list(regs)
        return regs if cfg.chk4 else regs[step-1::step]
    def tagcheck(regs, mask=None, extra=None):
        r = list(regs)
        a(f"v_xor_b32 {VC}, s95, {r[0]}")
        for x in r[1:]:
            a(f"v_bitop3_b32 {VC}, {VC}, {x}, s95 bitop3:0xf6")
        if extra:
            er, em = extra
            a(f"v_xor_b32 {VC2}, s95, {er[0]}")
            for x in er[1:]:
                a(f"v_bitop3_b32 {VC2}, {VC2}, {x}, s95 bitop3:0xf6")
            a(f"v_cndmask_b32 {VC2}, 0, {VC2}, {em}")
            a(f"v_or_b32 {VC}, {VC}, {VC2}")
        a(f"v_and_b32 {VC}, 0xff, {VC}")
        a(f"v_cmp_ne_u32 vcc, 0, {VC}")
        a(f"s_and_b64 vcc, vcc, {mask if mask else 'exec'}")
    def poll(loadfn, regs, mask=None, itstamp=None, extra=None):
        L = a.new('PL'); D = a.new('PD')
        a("s_mov_b32 s96, 0")
        a.label(L)
        loadfn()
        a("s_add_u32 s96, s96, 1")
        a("s_waitcnt vmcnt(0)")
        tagcheck(regs, mask, extra)
        a(f"""
        s_cbranch_scc0 {D}
        s_cmp_gt_u32 s96, {cfg.poll_max}
        s_cbranch_scc1 {D}
        """)
        if cfg.poll_sleep: a(f"s_sleep {cfg.poll_sleep}")
        a(f"""
        s_branch {L}
        {D}:
        """)
        if cfg.prof and itstamp is not None:
            a(f"v_writelane_b32 {VP0}, s96, {itstamp}")
    def poll2(loadfn, nloads, baseA, baseB, chk, consume, itstamp=None, space=2, mask=None, extra=None):
        ex = (lambda b: extra(b)) if extra else (lambda b: None)
        if not cfg.pipe:
            poll(lambda: loadfn(baseA), chk(baseA), itstamp=itstamp, mask=mask, extra=ex(baseA)); consume(baseA); return
        L = a.new('QL'); DA = a.new('QA'); DB = a.new('QB'); J = a.new('QJ')
        a("s_mov_b32 s96, 0")
        loadfn(baseA)
        if space: a(f"s_sleep {space}")
        a.label(L)
        loadfn(baseB)
        a("s_add_u32 s96, s96, 1")
        a(f"s_waitcnt vmcnt({nloads})")
        tagcheck(chk(baseA), mask, ex(baseA))
        a(f"s_cbranch_scc0 {DA}")
        loadfn(baseA)
        a(f"s_waitcnt vmcnt({nloads})")
        tagcheck(chk(baseB), mask, ex(baseB))
        a(f"""s_cbranch_scc0 {DB}
        s_cmp_gt_u32 s96, {cfg.poll_max}
        s_cbranch_scc0 {L}
        {DB}:""")
        consume(baseB)
        a(f"s_branch {J}")
        a.label(DA)
        consume(baseA)
        a.label(J)
        if cfg.prof == 1 and itstamp is not None:
            a(f"v_writelane_b32 {VP0}, s96, {itstamp}")
    def tagit(regs):
        for r in regs: a(f"v_bfi_b32 {r}, {VM8}, {VTAG}, {r}")
    def gettag():
        spin(F_TAG, 0x100)
        a("s_and_b32 s95, s97, 0xff")
        a(f"v_mov_b32 {VM8}, 0xff")
        a(f"v_mov_b32 {VTAG}, s95")
    def pub_local(instr):
        if not cfg.fast:
            a(instr + " sc1"); return
        F = a.new('PF'); D = a.new('PE')
        a(f"""
        s_cmp_eq_u32 s75, 2
        s_cbranch_scc1 {F}
        {instr} sc1
        s_branch {D}
        {F}:
        {instr}
        {D}:
        """)
    def vr(base, n): return [f"v{base+i}" for i in range(n)]
    def rng(base, n): return f"v[{base}:{base+n-1}]"
    def srd(s, ptr, size):
        a(f"""
        s_mov_b32 s{s}, s{ptr}
        s_mov_b32 s{s+1}, s{ptr+1}
        s_mov_b32 s{s+2}, {size}
        s_mov_b32 s{s+3}, 0x00020000
        """)
    def xrow16_sum(regs, t, op='v_add_f32'):
        for sw in ('v_permlane16_swap_b32', 'v_permlane32_swap_b32'):
            for i, r in enumerate(regs): a(f"v_mov_b32 v{t+i}, {r}")
            for i, r in enumerate(regs): a(f"{sw} v{t+i}, {r}")
            for i, r in enumerate(regs): a(f"{op} {r}, {r}, v{t+i}")
    def transred(b):
        a(f"""v_permlane32_swap_b32 v{b}, v{b+2}
        v_permlane32_swap_b32 v{b+1}, v{b+3}
        v_add_f32 v{b}, v{b}, v{b+2}
        v_add_f32 v{b+1}, v{b+1}, v{b+3}
        v_permlane16_swap_b32 v{b}, v{b+1}
        v_add_f32 v{b}, v{b}, v{b+1}""")
    def row16_sum(regs, op='v_add_f32'):
        for rot in (8, 4, 2, 1):
            for r in regs: a(f"{op}_dpp {r}, {r}, {r} row_ror:{rot} row_mask:0xf bank_mask:0xf")
    def bfround(regs, t):
        regs = list(regs)
        for i in range(0, len(regs), 2):
            if i + 1 < len(regs):
                a(f"""v_cvt_pk_bf16_f32 v{t}, {regs[i]}, {regs[i+1]}
                v_lshlrev_b32 {regs[i]}, 16, v{t}
                v_and_b32 {regs[i+1]}, 0xffff0000, v{t}""")
            else:
                a(f"""v_cvt_pk_bf16_f32 {regs[i]}, {regs[i]}, {regs[i]}
                v_lshlrev_b32 {regs[i]}, 16, {regs[i]}""")
    def unpack(src, lo, hi):
        a(f"""v_lshlrev_b32 {lo}, 16, {src}
        v_and_b32 {hi}, 0xffff0000, {src}""")
    def fdiv(dst, num, den_rcp, den, t):
        a(f"""v_mul_f32 {dst}, {num}, {den_rcp}
        v_fma_f32 {t}, -{dst}, {den}, {num}
        v_fma_f32 {dst}, {t}, {den_rcp}, {dst}""")
    def ln_finish(mean, var, t):
        bfround([mean, var], t)
        a(f"v_add_f32 {var}, {fl(1e-5)}, {var}")
        bfround([var], t)
        a(f"v_sqrt_f32 {var}, {var}")
        bfround([var], t)
    def pkadd(d, x, y): a(f"v_pk_add_f32 {rng(d,2)}, {rng(x,2)}, {rng(y,2)}")
    def tr_geom(b):
        a(f"""
        v_lshrrev_b32 v{b}, 4, v0
        v_lshrrev_b32 v{b+1}, 2, v0
        v_and_b32 v{b+1}, 3, v{b+1}
        v_and_b32 v{b+2}, 3, v0
        v_lshrrev_b32 v{b+3}, 1, v{b+1}
        v_and_b32 v{b+4}, 1, v{b}
        v_lshlrev_b32 v{b+4}, 1, v{b+4}
        v_or_b32 v{b+3}, v{b+3}, v{b+4}
        v_lshlrev_b32 v{b+4}, 3, v{b}
        v_add_u32 v{b+4}, v{b+4}, v{b+1}
        v_lshlrev_b32 v{b+5}, 3, v{b+2}
        """)
    def off128(dst_even, dst_odd, rs, t):
        a(f"""
        v_lshrrev_b32 v{t}, 3, v0
        v_and_b32 v{t+1}, 7, v0
        v_lshrrev_b32 v{t+2}, 1, v{t}
        v_and_b32 v{t+2}, 1, v{t+2}
        v_lshrrev_b32 v{t+3}, 1, v{t+1}
        v_xor_b32 v{t+3}, v{t+3}, v{t+2}
        v_lshlrev_b32 v{t+3}, 5, v{t+3}
        v_and_b32 v{t+2}, 1, v{t+1}
        v_lshlrev_b32 v{t+2}, 4, v{t+2}
        v_or_b32 v{t+3}, v{t+3}, v{t+2}
        """)
        if isinstance(rs, int): a(f"v_mul_u32_u24 {dst_even}, {rs}, v{t}")
        else: a(f"v_mul_lo_u32 {dst_even}, v{t}, {rs}")
        a(f"""
        v_add_u32 {dst_even}, {dst_even}, v{t+3}
        v_xor_b32 {dst_odd}, 64, {dst_even}
        """)
    def off384(even0, odd0, rs, t):
        for ph in range(3):
            a(f"""
            v_add_u32 v{t}, {64*ph}, v0
            v_mul_u32_u24 v{t+1}, 2731, v{t}
            v_lshrrev_b32 v{t+1}, 16, v{t+1}
            v_mul_u32_u24 v{t+2}, 24, v{t+1}
            v_sub_u32 v{t+2}, v{t}, v{t+2}
            v_lshrrev_b32 v{t+3}, 1, v{t+1}
            v_and_b32 v{t+3}, 1, v{t+3}
            v_lshrrev_b32 v{t}, 1, v{t+2}
            v_xor_b32 v{t}, v{t}, v{t+3}
            v_lshlrev_b32 v{t}, 5, v{t}
            v_and_b32 v{t+2}, 1, v{t+2}
            v_lshlrev_b32 v{t+2}, 4, v{t+2}
            v_or_b32 v{t}, v{t}, v{t+2}
            v_mul_u32_u24 v{t+2}, {rs}, v{t+1}
            v_add_u32 v{even0+ph}, v{t+2}, v{t}
            v_xor_b32 v{odd0+ph}, 64, v{even0+ph}
            """)

    a(f"""
    s_cmp_ge_u32 s2, 256
    s_cbranch_scc1 L_END
    s_load_dwordx16 s[8:23], s[0:1], 0
    s_load_dwordx8 s[24:31], s[0:1], 64
    s_load_dwordx4 s[32:35], s[0:1], 96
    v_lshrrev_b32 v1, 6, v0
    v_and_b32 v0, 63, v0
    s_getpc_b64 s[56:57]
    .Lpcref:
    s_lshr_b32 s5, s2, 3
    v_readfirstlane_b32 s3, v1
    s_sub_u32 s56, s56, .Lpcref-{KNAME}
    s_subb_u32 s57, s57, 0
    s_and_b32 s4, s2, 7
    """)
    if cfg.pf_top:
        a(f"""
        s_cmp_ge_u32 s3, {cfg.pf_chunks}
        s_cbranch_scc1 L_NOPF
        s_mul_i32 s6, s5, {cfg.pf_chunks}
        s_add_u32 s6, s6, s3
        s_mul_i32 s7, s6, {(65536 + cfg.npiece - 1)//cfg.npiece}
        s_lshr_b32 s7, s7, 16
        s_mul_i32 s7, s7, {cfg.npiece}
        s_sub_u32 s6, s6, s7
        s_lshl_b32 s6, s6, 10
        v_lshl_add_u32 v2, v0, 4, s6
        global_load_dwordx4 v[152:155], v2, s[56:57]
        L_NOPF:
        """)
    a(f"v_mov_b32 {VF}, {L_FLG}")
    if cfg.prof: a(f"v_mov_b32 {VP0}, 0")
    a(f"""
    s_lshr_b32 s40, s5, 3              ; hl
    s_lshl_b32 s41, s4, 2
    s_add_u32 s41, s41, s40            ; head
    s_mul_i32 s42, s5, 26
    s_lshr_b32 s42, s42, 8             ; q10 = j/10
    s_mul_i32 s43, s42, 10
    s_sub_u32 s43, s5, s43             ; kj = j%10
    s_lshl_b32 s44, s2, 13
    s_lshr_b32 s45, s5, 2
    s_and_b32 s45, s45, 1
    s_and_b32 s46, s5, 7               ; r
    s_mov_b32 s48, 0xffff0000
    s_mov_b32 s49, 0
    s_mov_b32 s50, 0
    s_mov_b32 s51, 0x0000ffff
    s_mov_b32 s52, 0
    s_mov_b32 s53, 0xffff0000
    s_mov_b32 s75, 1
    s_mov_b32 s79, 63
    s_cmp_lt_u32 s3, 8
    s_cbranch_scc1 L_KWAVE
    s_cmp_eq_u32 s3, 9
    s_cbranch_scc1 L_CHAIN
    s_cmp_gt_u32 s3, 9
    s_cbranch_scc1 L_POST
    """)
    def start_sync():
        a("s_waitcnt lgkmcnt(0)")
        a("s_barrier")
        stamp(0)
        srd(36, 34, WS_BYTES)

    W = cfg.WL
    a(f"s_mov_b32 s78, {R_LD}")
    a("s_setprio 2")
    off128('v10', 'v11', 7680, 1)
    off384(12, 15, 12288, 1)
    a(f"""
    s_lshr_b32 s6, s4, 1
    s_mul_i32 s84, s6, {160*7680}
    s_and_b32 s6, s4, 1
    s_mul_i32 s6, s6, 30
    s_add_u32 s6, s6, s5
    s_lshl_b32 s6, s6, 7
    s_add_u32 s84, s84, s6
    s_mul_i32 s87, s46, {80*12288}
    s_mul_i32 s6, s41, 384
    s_add_u32 s87, s87, s6
    s_mov_b32 s85, {L_MW}
    s_mov_b32 s86, 0
    """)
    start_sync()
    srd(56, 28, 4915200)
    srd(60, 14, 7864320)
    a(f"""
    s_cmp_lt_u32 s5, 30
    s_cbranch_scc1 L_LD_M
    s_mov_b32 s78, {R_LDX}
    s_branch L_LD_Q0
    L_LD_M:
    """)
    for par in range(2):
        a(f"""s_waitcnt vmcnt({W-1})
        s_mov_b32 m0, s85
        s_add_u32 s85, s85, 1024
        buffer_load_dwordx4 v{10+par}, s[56:59], s84 offen {NT} lds
        s_add_u32 s84, s84, {8*7680}""")
    a(f"""
    s_add_u32 s86, s86, 1
    s_cmp_lt_u32 s86, 10
    s_cbranch_scc1 L_LD_M
    L_LD_Q0:
    s_mov_b32 s85, {L_W}
    s_mov_b32 s86, 0
    L_LD_Q:
    """)
    for par in range(2):
        for ph in range(3):
            a(f"""s_waitcnt vmcnt({W-1})
            s_mov_b32 m0, s85
            s_add_u32 s85, s85, 1024
            buffer_load_dwordx4 v{12+3*par+ph}, s[60:63], s87 offen {NT} lds""")
        a(f"s_add_u32 s87, s87, {8*12288}")
    assert W >= 31
    a(f"""
    s_add_u32 s86, s86, 1
    s_cmp_lt_u32 s86, 5
    s_cbranch_scc1 L_LD_Q
    """)
    setflag(F_KGO)
    stamp(1)
    a("s_waitcnt vmcnt(30)")
    setflag(F_MLAND); stamp(2)
    a("s_waitcnt vmcnt(0)")
    setflag(F_WQLAND)
    stamp(3)
    gettag()
    a("s_branch L_QSTAGE")

    a.label("L_KWAVE")
    a(f"""
    s_mov_b32 s78, {R_K}
    s_cmp_lt_u32 s5, 30
    s_cbranch_scc1 L_K_ROLE
    s_mov_b32 s78, {R_KX}
    L_K_ROLE:
    """)
    a(f"""
    s_cmp_lg_u32 s3, 0
    s_cbranch_scc1 L_NOZ
    v_mov_b32 v2, 0
    v_lshlrev_b32 v3, 2, v0
    v_add_u32 v3, {L_FLG}, v3
    s_mov_b64 exec, 0xffff
    ds_write_b32 v3, v2
    s_mov_b64 exec, -1
    L_NOZ:
    s_lshl_b32 s6, s45, 5
    s_add_u32 s6, s6, s41
    s_mul_i32 s47, s6, 1572864
    s_and_b32 s6, s5, 3
    s_mul_i32 s6, s6, 98304
    s_add_u32 s47, s47, s6
    s_add_u32 s47, s47, 1179648
    """)
    KV = 8
    off384(72, 75, 384, 1)
    off128('v78', 'v79', 1280, 1)
    a(f"""
    v_lshrrev_b32 v1, 3, v0
    v_mul_u32_u24 v1, 384, v1
    v_and_b32 v2, 7, v0
    v_lshlrev_b32 v2, 4, v2
    v_add_u32 v1, v1, v2
    s_mul_i32 s84, s3, 12288
    s_add_u32 s85, s84, {L_V}
    s_add_u32 s84, s84, s47
    s_mul_i32 s80, s4, 768
    s_lshl_b32 s6, s42, 8
    s_add_u32 s80, s80, s6
    s_lshl_b32 s6, s3, 5
    s_add_u32 s80, s80, s6
    s_mul_i32 s80, s80, 1280
    s_lshl_b32 s6, s43, 7
    s_add_u32 s80, s80, s6
    s_lshl_b32 s81, s3, 12
    s_add_u32 s81, s81, {L_W}
    """)
    start_sync()
    srd(56, 10, 100663296)
    srd(60, 12, 100663296)
    srd(64, 16, 7864320)
    spin(F_KGO, 1)
    stamp(1)
    def scores():
        spin(F_QRDY, 1)
        stamp(4)
        a(f"""
        v_add_u32 v3, {L_Q}, v2
        ds_read_b128 v[56:59], v3
        ds_read_b128 v[60:63], v3 offset:128
        ds_read_b128 v[64:67], v3 offset:256
        v_mov_b32 v68, 0
        v_mov_b32 v69, 0
        v_mov_b32 v70, 0
        v_mov_b32 v71, 0
        s_waitcnt lgkmcnt(0)
        """)
        for ph in range(3):
            for d in range(4):
                for gi in range(4):
                    a(f"v_dot2_f32_bf16 v{68+gi}, v{KV+4*(3*gi+ph)+d}, v{56+4*ph+d}, v{68+gi}")
        for mode in ("quad_perm:[1,0,3,2]", "quad_perm:[2,3,0,1]", "row_half_mirror"):
            for gi in range(4):
                a(f"v_add_f32_dpp v{68+gi}, v{68+gi}, v{68+gi} {mode} row_mask:0xf bank_mask:0xf")
        bfround(vr(68, 4), 7)
        for gi in range(4): a(f"v_mul_f32 v{68+gi}, {fl(SCALE)}, v{68+gi}")
        bfround(vr(68, 4), 7)
        a(f"""
        s_mov_b32 s88, 0x02020202
        s_mov_b32 s89, 0x02020202
        s_mov_b32 s90, 0x04040404
        s_mov_b32 s91, 0x04040404
        s_mov_b32 s92, 0x08080808
        s_mov_b32 s93, 0x08080808
        v_cndmask_b32 v68, v68, v69, s[88:89]
        v_cndmask_b32 v68, v68, v70, s[90:91]
        v_cndmask_b32 v68, v68, v71, s[92:93]
        v_and_b32 v3, 7, v0
        v_lshlrev_b32 v3, 5, v3
        v_lshrrev_b32 v4, 3, v0
        v_lshlrev_b32 v4, 2, v4
        v_add_u32 v3, v3, v4
        s_lshl_b32 s6, s3, 7
        s_add_u32 s6, s6, {L_S}
        v_add_u32 v3, s6, v3
        s_mov_b32 exec_lo, 0x0f0f0f0f
        s_mov_b32 exec_hi, 0x0f0f0f0f
        ds_write_b32 v3, v68
        s_mov_b64 exec, -1
        s_waitcnt lgkmcnt(0)
        """)
        addflag(F_SCNT)
        stamp(5)
    WK, WV = cfg.WK, cfg.WV
    assert cfg.SIDX >= 11 + WV and cfg.SIDX <= 24
    for idx in range(24):
        gi, ph = (idx % 12) // 3, idx % 3
        Wn = WK if idx < 12 else WV
        if idx == cfg.SIDX: scores()
        if idx >= Wn: a(f"s_waitcnt vmcnt({Wn-1})")
        if idx == 11 + WV: stamp(2)
        if ph == 0: a(f"s_add_u32 s86, s84, {3072*gi}")
        if idx < 12:
            a(f"buffer_load_dwordx4 {rng(KV+4*idx,4)}, v1, s[56:59], s86 offen offset:{128*ph} {NT}")
        else:
            a(f"""s_add_u32 m0, s85, {3072*gi + 1024*ph}
            s_nop 0
            buffer_load_dwordx4 v{72 + 3*(gi & 1) + ph}, s[60:63], s86 offen {NT} lds""")
    if cfg.SIDX == 24: scores()
    stamp(3)
    a(f"""
    s_cmp_eq_u32 s78, {R_KX}
    s_cbranch_scc1 L_K_NOWOLD
    """)
    for k in range(4):
        a(f"""s_waitcnt vmcnt({WV-1})
        s_add_u32 m0, s81, {1024*k}
        s_nop 0
        buffer_load_dwordx4 v{78 + (k & 1)}, s[64:67], s80 offen {NT} lds""")
        if k < 3: a(f"s_add_u32 s80, s80, {8*1280}")
    a(f"""
    s_mov_b32 s79, 4
    s_branch L_PV
    L_K_NOWOLD:
    s_mov_b32 s79, 0
    s_branch L_PV
    """)

    a.label("L_CHAIN")
    a(f"""s_mov_b32 s78, {R_CH}
    s_cmp_lt_u32 s5, 30
    s_cbranch_scc1 L_CH_ROLE
    s_mov_b32 s78, {R_CHX}
    L_CH_ROLE:""")
    a("s_setprio 3")
    a(f"""
    v_lshlrev_b32 v1, 2, v0
    v_mul_u32_u24 v2, 13, v0
    v_lshrrev_b32 v2, 8, v2
    v_mul_u32_u24 v3, 20, v2
    v_sub_u32 v3, v0, v3               ; c = lane%20
    v_cmp_gt_u32 vcc, 40, v0
    v_mov_b32 v7, {OOB:#x}
    s_mul_i32 s6, s46, 160
    v_mul_u32_u24 v4, 1280, v2
    v_lshlrev_b32 v5, 3, v3
    v_add3_u32 v5, v4, v5, s6
    v_cndmask_b32 v5, v7, v5, vcc
    s_lshr_b32 s6, s4, 1
    s_mul_i32 s6, s6, 320
    v_lshlrev_b32 v6, 4, v3
    v_add3_u32 v6, v4, v6, s6
    v_cndmask_b32 v6, v7, v6, vcc
    """)
    start_sync()
    srd(56, 8, 2560)
    srd(60, 26, 2560)
    a("buffer_load_dwordx4 v[20:23], v6, s[60:63], 0 offen")
    for b in range(2):
        for i in range(5):
            a(f"buffer_load_dword v{8+5*b+i}, v1, s[56:59], 0 offen offset:{1280*b+256*i}")
    a(f"""
    buffer_load_dwordx2 v[18:19], v5, s[56:59], 0 offen
    s_waitcnt vmcnt(11)
    """)
    stamp(1)
    for i in range(4): unpack(f"v{20+i}", f"v{24+2*i}", f"v{25+2*i}")
    for i in range(8): a(f"v_mul_f32 v{32+i}, {fl(-LOG2E)}, v{24+i}")
    for i in range(8): a(f"v_exp_f32 v{32+i}, v{32+i}")
    for i in range(8): a(f"v_add_f32 v{32+i}, 1.0, v{32+i}")
    for i in range(8): a(f"v_rcp_f32 v{40+i}, v{32+i}")
    for i in range(8): fdiv(f"v{48+i}", f"v{24+i}", f"v{40+i}", f"v{32+i}", "v56")
    for i in range(4): a(f"v_cvt_pk_bf16_f32 v{20+i}, v{48+2*i}, v{49+2*i}")
    a(f"""
    v_mul_u32_u24 v4, 320, v2
    v_lshlrev_b32 v7, 4, v3
    v_add_u32 v4, v4, v7
    v_add_u32 v4, {L_SC}, v4
    s_mov_b32 exec_hi, 0xff
    ds_write_b128 v4, v[20:23]
    s_mov_b32 exec_hi, -1
    s_waitcnt lgkmcnt(0)
    """)
    setflag(F_SCRDY)
    gettag()
    a("s_waitcnt vmcnt(0)")
    a("s_branch L_CH_LN")

    a.label("L_MSTAGE")
    tr_geom(100)
    a(f"""
    s_sub_u32 s72, s3, 10
    s_lshl_b32 s73, s72, 1
    v_xor_b32 v106, s73, v103
    v_lshlrev_b32 v106, 5, v106
    v_lshlrev_b32 v107, 7, v104
    v_add_u32 v107, v107, v105
    v_add_u32 v107, {L_MW}, v107
    v_xor_b32 v112, 32, v106
    v_add_u32 v112, v112, v107
    v_add_u32 v107, v106, v107
    v_and_b32 v108, 1, v0
    v_mul_u32_u24 v108, 320, v108
    v_lshlrev_b32 v109, 4, v100
    v_add_u32 v108, v108, v109
    v_add_u32 v108, {L_SC}, v108       ; A address
    ; store: 256*(g>>1) + 128u + 64*(g&1) + 4*(l&15)
    v_lshrrev_b32 v110, 1, v100
    v_lshlrev_b32 v110, 8, v110
    v_and_b32 v111, 1, v100
    v_lshlrev_b32 v111, 6, v111
    v_and_b32 v113, 15, v0
    v_lshlrev_b32 v113, 2, v113
    v_add3_u32 v110, v110, v111, v113
    s_lshl_b32 s6, s72, 7
    v_add_u32 v110, s6, v110
    """)
    spin(F_SCRDY, 1)
    for t in range(5): a(f"ds_read_b128 {rng(48+4*t,4)}, v108 offset:{64*t}")
    spin(F_MLAND, 1)
    for t in range(5):
        for hh in range(2):
            a(f"ds_read_b64_tr_b16 {rng(68+4*t+2*hh,2)}, v107 offset:{4096*t+512*hh}")
    for t in range(5):
        a(f"s_waitcnt lgkmcnt({2*(4-t) + 2*t})")
        c = '0' if t == 0 else 'v[96:99]'
        a(f"v_mfma_f32_16x16x32_bf16 v[96:99], {rng(48+4*t,4)}, {rng(68+4*t,4)}, {c}")
        for hh in range(2):
            a(f"ds_read_b64_tr_b16 {rng(120+4*t+2*hh,2)}, v112 offset:{4096*t+512*hh}")
    for t in range(5):
        a(f"s_waitcnt lgkmcnt({2*(4-t)})")
        c = '0' if t == 0 else 'v[140:143]'
        a(f"v_mfma_f32_16x16x32_bf16 v[140:143], {rng(48+4*t,4)}, {rng(120+4*t,4)}, {c}")
    a(f"""
    v_cndmask_b32 v96, v96, v140, s[48:49]
    v_cndmask_b32 v96, v96, v97, s[50:51]
    v_cndmask_b32 v96, v96, v141, s[52:53]
    """)
    tagit(['v96'])
    a(f"""
    buffer_store_dword v96, v110, s[36:39], s44 offen offset:{O_MP} sc1
    s_branch L_POST_M
    L_CH_LN:
    """)
    stamp(3)
    for b in range(2):
        for i in range(5): unpack(f"v{8+5*b+i}", f"v{24+10*b+2*i}", f"v{25+10*b+2*i}")
    for b in range(2):
        a(f"v_add_f32 v{44+b}, v{24+10*b}, v{25+10*b}")
        for i in range(2, 10): a(f"v_add_f32 v{44+b}, v{44+b}, v{24+10*b+i}")
    row16_sum(['v44', 'v45']); xrow16_sum(['v44', 'v45'], 50)
    for b in range(2): a(f"v_mul_f32 v{44+b}, {fl(1/640)}, v{44+b}")
    for b in range(2):
        for i in range(10): a(f"v_sub_f32 v{24+10*b+i}, v{24+10*b+i}, v{44+b}")
        a(f"v_mul_f32 v{46+b}, v{24+10*b}, v{24+10*b}")
        for i in range(1, 10): a(f"v_fma_f32 v{46+b}, v{24+10*b+i}, v{24+10*b+i}, v{46+b}")
    row16_sum(['v46', 'v47']); xrow16_sum(['v46', 'v47'], 50)
    for b in range(2): a(f"v_mul_f32 v{46+b}, {fl(1/640)}, v{46+b}")
    ln_finish('v44', 'v46', 50); ln_finish('v45', 'v47', 50)
    a(f"""
    v_cmp_eq_u32 vcc, 1, v2
    v_cndmask_b32 v44, v44, v45, vcc
    v_cndmask_b32 v46, v46, v47, vcc
    v_rcp_f32 v47, v46
    """)
    unpack('v18', 'v24', 'v25'); unpack('v19', 'v26', 'v27')
    for i in range(4): a(f"v_sub_f32 v{24+i}, v{24+i}, v44")
    bfround(vr(24, 4), 50)
    for i in range(4): fdiv(f"v{28+i}", f"v{24+i}", "v47", "v46", "v50")
    bfround(vr(28, 4), 50)
    a(f"""
    s_mov_b32 s68, -1
    s_mov_b32 s69, 0xff               ; lanes < 40
    s_mov_b32 s70, -1
    s_mov_b32 s71, 0xffff             ; lanes < 48
    s_mul_i32 s6, s46, 80
    v_lshlrev_b32 v4, 2, v3
    v_add_u32 v4, s6, v4               ; col
    v_lshlrev_b32 v5, 8, v2            ; 256*b
    v_mov_b32 v7, {OOB:#x}
    v_cmp_gt_u32 vcc, 40, v0
    """)
    for wh in range(2):
        a(f"""
        v_add_u32 v6, {640*wh}, v4
        v_lshrrev_b32 v15, 6, v6
        v_lshlrev_b32 v15, 16, v15
        v_and_b32 v6, 63, v6
        v_lshlrev_b32 v6, 2, v6
        v_add3_u32 v6, v6, v15, v5
        v_cndmask_b32 v{20+wh}, v7, v6, vcc
        """)
    a(f"""
    s_mov_b32 s84, 0
    s_mov_b32 s85, {2*REGION}
    s_mov_b32 s86, {4*REGION}
    s_mov_b32 s87, {6*REGION}
    """)
    spin(F_WQLAND, 1)
    stamp(4)
    def mp_loads(base):
        for wh in range(2):
            for ks in range(4):
                a(f"buffer_load_dwordx4 {rng(base+16*wh+4*ks,4)}, v{20+wh}, s[36:39], s{84+ks} offen offset:{O_MP} sc1")
    def mp_consume(base):
        for wh in range(2):
            B = base + 16*wh; D = 100 + 8*wh
            for h in range(2):
                pkadd(D+2*h, B+2*h, B+4+2*h); pkadd(D+4+2*h, B+8+2*h, B+12+2*h)
            for h in range(2): pkadd(D+2*h, D+2*h, D+4+2*h)
    if cfg.dm: a(f"s_sleep {cfg.dm}")
    poll2(mp_loads, 8, 32, 64, lambda b: pick(vr(b, 32), 4), mp_consume, itstamp=30, space=cfg.sp_m, mask='s[68:69]')
    stamp(5)
    bfround(vr(100, 4), 22); bfround(vr(108, 4), 22)
    for i in range(4): a(f"v_add_f32 v{108+i}, 1.0, v{108+i}")
    bfround(vr(108, 4), 22)
    for i in range(4): a(f"v_mul_f32 v{28+i}, v{28+i}, v{108+i}")
    bfround(vr(28, 4), 22)
    for i in range(4): a(f"v_add_f32 v{28+i}, v{28+i}, v{100+i}")
    a(f"""
    v_cvt_pk_bf16_f32 v24, v28, v29
    v_cvt_pk_bf16_f32 v25, v30, v31
    v_mul_u32_u24 v4, 160, v2
    v_lshlrev_b32 v5, 3, v3
    v_add_u32 v4, v4, v5
    v_add_u32 v4, {L_H}, v4
    s_mov_b32 exec_hi, 0xff
    ds_write_b64 v4, v[24:25]
    s_mov_b32 exec_hi, -1
    s_waitcnt lgkmcnt(0)
    """)
    setflag(F_HRDY)
    stamp(6)
    a("s_branch L_CH_QPOLL")

    a.label("L_QSTAGE")
    tr_geom(100)
    QA = [112, 113, 114, 115]; QT = [116, 117, 118, 119]
    a(f"""
    s_sub_u32 s72, s3, 9
    s_max_i32 s72, s72, 0              ; G: wave 8 -> 0, 10 -> 1, 11 -> 2
    s_lshl_b32 s73, s72, 7             ; 128G
    s_lshl_b32 s74, s72, 8
    s_add_u32 s74, s74, s44
    v_and_b32 v106, 1, v0
    v_mul_u32_u24 v106, 160, v106
    v_add_u32 v106, {L_H}, v106
    v_lshlrev_b32 v107, 4, v100
    v_add_u32 v107, v107, v106
    v_lshlrev_b32 v108, 3, v100
    v_add_u32 v108, v108, v106
    v_mul_u32_u24 v109, 384, v104
    v_add3_u32 v109, v109, v105, s73
    v_add_u32 v109, {L_W}, v109
    v_lshlrev_b32 v110, 2, v100
    v_add_u32 v110, v110, v101
    v_mul_u32_u24 v110, 384, v110
    v_add3_u32 v110, v110, v105, s73
    v_add_u32 v110, {L_W + 64*384}, v110
    v_lshrrev_b32 v111, 1, v101
    v_and_b32 v106, 2, v100
    v_or_b32 v111, v111, v106          ; sigma'
    v_lshlrev_b32 v120, 2, v0
    """)
    for q in range(4):
        a(f"""v_xor_b32 v{QA[q]}, {q}, v103
        v_lshlrev_b32 v{QA[q]}, 5, v{QA[q]}
        v_add_u32 v{QA[q]}, v{QA[q]}, v109
        v_xor_b32 v{QT[q]}, {q}, v111
        v_lshlrev_b32 v{QT[q]}, 5, v{QT[q]}
        v_add_u32 v{QT[q]}, v{QT[q]}, v110""")
    spin(F_FAST, 1)
    a("s_mov_b32 s75, s97")
    spin(F_WQLAND, 1)
    def qreads(q):
        base = 58 + 10*(q & 1)
        for t in range(2):
            for hh in range(2):
                a(f"ds_read_b64_tr_b16 {rng(base+4*t+2*hh,2)}, v{QA[q]} offset:{(32*t+4*hh)*384}")
        a(f"ds_read_b64_tr_b16 {rng(base+8,2)}, v{QT[q]} offset:0")
    qreads(0); qreads(1)
    spin(F_HRDY, 1)
    stamp(2)
    a("""ds_read_b128 v[48:51], v107
    ds_read_b128 v[52:55], v107 offset:64
    ds_read_b64 v[56:57], v108 offset:128
    s_waitcnt lgkmcnt(0)""")
    for q in range(4):
        base = 58 + 10*(q & 1)
        if q >= 2: a(f"s_waitcnt lgkmcnt({5 if q < 3 else 0})")
        a(f"v_mfma_f32_16x16x32_bf16 {rng(80+4*q,4)}, v[48:51], {rng(base,4)}, 0")
        a(f"v_mfma_f32_16x16x16_bf16 {rng(96+4*q,4)}, v[56:57], {rng(base+8,2)}, 0")
        a(f"v_mfma_f32_16x16x32_bf16 {rng(80+4*q,4)}, v[52:55], {rng(base+4,4)}, {rng(80+4*q,4)}")
        if q + 2 < 4: qreads(q+2)
    for b in range(2):
        a(f"""v_cndmask_b32 v{78+b}, v{80+b}, v{84+b}, s[48:49]
        v_cndmask_b32 v{76+b}, v{96+b}, v{100+b}, s[48:49]
        v_cndmask_b32 v{78+b}, v{78+b}, v{88+b}, s[50:51]
        v_cndmask_b32 v{76+b}, v{76+b}, v{104+b}, s[50:51]
        v_cndmask_b32 v{78+b}, v{78+b}, v{92+b}, s[52:53]
        v_cndmask_b32 v{76+b}, v{76+b}, v{108+b}, s[52:53]
        v_add_f32 v{78+b}, v{78+b}, v{76+b}""")
    tagit(['v78', 'v79'])
    if cfg.fast:
        a(f"""
        s_cmp_eq_u32 s75, 2
        s_cbranch_scc1 L_QS_F
        buffer_store_dword v78, v120, s[36:39], s74 offen offset:{O_QP} sc1
        buffer_store_dword v79, v120, s[36:39], s74 offen offset:{O_QP+768} sc1
        s_branch L_QS_D
        L_QS_F:
        buffer_store_dword v78, v120, s[36:39], s74 offen offset:{O_QP}
        buffer_store_dword v79, v120, s[36:39], s74 offen offset:{O_QP+768}
        L_QS_D:
        """)
    else:
        a(f"""
        buffer_store_dword v78, v120, s[36:39], s74 offen offset:{O_QP} sc1
        buffer_store_dword v79, v120, s[36:39], s74 offen offset:{O_QP+768} sc1
        """)
    addflag(F_QS)
    stamp(7)
    a(f"""
    s_branch L_PV
    L_CH_QPOLL:
    """)
    a(f"""
    s_lshl_b32 s6, s40, 6
    s_add_u32 s6, s6, s4
    s_lshl_b32 s84, s6, 13
    s_mul_i32 s6, s45, 768
    s_add_u32 s84, s84, s6
    v_lshlrev_b32 v4, 4, v0
    v_mov_b32 v7, {OOB:#x}
    v_cmp_gt_u32 vcc, 48, v0
    v_cndmask_b32 v4, v7, v4, vcc
    """)
    for i in range(1, 8): a(f"s_add_u32 s{84+i}, s{84+i-1}, {8*REGION}")
    def qp_loads(base):
        for i in range(8):
            a(f"buffer_load_dwordx4 {rng(base+4*i,4)}, v4, s[36:39], s{84+i} offen offset:{O_QP} sc1")
    def qp_consume(base):
        for h in range(2):
            for i in range(4): pkadd(8+4*i+2*h, base+8*i+2*h, base+8*i+4+2*h)
        for h in range(2):
            pkadd(8+2*h, 8+2*h, 12+2*h); pkadd(16+2*h, 16+2*h, 20+2*h)
        for h in range(2): pkadd(32 - 24 + 2*h, 8+2*h, 16+2*h)
    spin(F_QS, 3)
    stamp(7)
    if cfg.dq: a(f"s_sleep {cfg.dq}")
    poll2(qp_loads, 8, 96, 128, lambda b: pick(vr(b, 32), 4), qp_consume, itstamp=31, space=cfg.sp_q, mask='s[70:71]')
    stamp(9)
    a(f"""
    v_cvt_pk_bf16_f32 v24, v8, v9
    v_cvt_pk_bf16_f32 v25, v10, v11
    v_lshlrev_b32 v4, 3, v0
    v_add_u32 v4, {L_Q}, v4
    s_mov_b32 exec_hi, 0xffff
    ds_write_b64 v4, v[24:25]
    s_mov_b32 exec_hi, -1
    s_waitcnt lgkmcnt(0)
    """)
    setflag(F_QRDY)
    spin(F_SCNT, 8)
    stamp(10)
    a(f"""
    v_lshlrev_b32 v4, 4, v0
    v_add_u32 v4, {L_S}, v4
    ds_read_b128 v[32:35], v4
    s_waitcnt lgkmcnt(0)
    v_max3_f32 v36, v32, v33, v34
    v_max_f32 v36, v36, v35
    """)
    row16_sum(['v36'], 'v_max_f32'); xrow16_sum(['v36'], 50, 'v_max_f32')
    a(f"v_mul_f32 v36, {fl(LOG2E)}, v36")
    tagit(['v36'])
    a(f"s_mov_b32 s6, {fl(LOG2E)}")
    for i in range(4): a(f"v_fma_f32 v{32+i}, v{32+i}, s6, -v36")
    for i in range(4): a(f"v_exp_f32 v{32+i}, v{32+i}")
    a(f"""
    v_add_f32 v37, v32, v33
    v_add_f32 v38, v34, v35
    v_cvt_pk_bf16_f32 v24, v32, v33
    v_cvt_pk_bf16_f32 v25, v34, v35
    v_add_f32 v37, v37, v38
    v_lshlrev_b32 v4, 3, v0
    v_add_u32 v4, {L_P}, v4
    ds_write_b64 v4, v[24:25]
    """)
    spin(F_FAST, 1)
    a("s_mov_b32 s75, s97")
    setflag(F_PRDY)
    row16_sum(['v37']); xrow16_sum(['v37'], 50)
    tagit(['v37'])
    a(f"""
    v_mov_b32 v7, {OOB:#x}
    v_cmp_eq_u32 vcc, 0, v0
    v_cndmask_b32 v4, v7, 0, vcc
    """)
    a("s_waitcnt vmcnt(0)")
    pub_local(f"buffer_store_dwordx2 v[36:37], v4, s[36:39], s44 offen offset:{O_ML}")
    stamp(11)
    a("s_branch L_PV")

    a.label("L_POST")
    a("s_setprio 3")
    a("s_sub_u32 s54, s3, 10")
    start_sync()
    a(f"""
    s_cmp_eq_u32 s54, 0
    s_cbranch_scc0 L_POST_W11
    s_mov_b32 s78, {R_P0}
    s_cmp_lt_u32 s5, 30
    s_cbranch_scc1 L_POST_R0
    s_mov_b32 s78, {R_P0X}
    L_POST_R0:
    v_mov_b32 v2, {EPOCH_OFF}
    buffer_load_dword v47, v2, s[36:39], 0 offen sc1
    s_getreg_b32 s76, hwreg(HW_REG_XCC_ID)
    s_and_b32 s76, s76, 15
    s_waitcnt vmcnt(0)
    v_add_u32 v47, 1, v47
    v_and_b32 v3, 0xff, v47
    v_or_b32 v4, 0x100, v3
    ds_write_b32 {VF}, v47 offset:{F_EPOCH}
    ds_write_b32 {VF}, v4 offset:{F_TAG}
    s_lshl_b32 s6, s76, 8
    v_or_b32 v3, s6, v3                ; (xcc<<8)|tag
    v_mov_b32 v4, {OOB:#x}
    v_cmp_eq_u32 vcc, 0, v0
    v_cndmask_b32 v4, v4, 0, vcc
    buffer_store_dword v3, v4, s[36:39], s44 offen offset:{O_XC} sc1
    s_branch L_POST_A
    L_POST_W11:
    s_mov_b32 s78, {R_P1}
    s_cmp_lt_u32 s5, 30
    s_cbranch_scc1 L_POST_R1
    s_mov_b32 s78, {R_P1X}
    L_POST_R1:
    """)
    if not cfg.pf_top:
        a(f"""
        s_mov_b32 s58, L_CODE_END-{KNAME}
        s_mov_b32 s59, 0x00020000
        s_lshl_b32 s6, s5, 10
        v_lshlrev_b32 v2, 4, v0
        buffer_load_dwordx4 v[152:155], v2, s[56:59], s6 offen
        """)
    srd(56, 16, 7864320); srd(60, 20, 1966080); srd(64, 22, 1966080); srd(68, 24, 1966080)
    a(f"""
    s_mul_i32 s6, s4, 768
    s_lshl_b32 s7, s42, 8
    s_add_u32 s6, s6, s7
    s_mul_i32 s6, s6, 1280
    v_lshlrev_b32 v3, 16, v0
    v_mov_b32 v4, {OOB:#x}
    v_cmp_gt_u32 vcc, 5, v0
    v_cndmask_b32 v3, v4, v3, vcc
    buffer_load_dword v156, v3, s[56:59], s6 offen
    s_mul_i32 s6, s43, {64*3072}
    buffer_load_dword v157, v3, s[60:63], s6 offen
    buffer_load_dword v158, v3, s[64:67], s6 offen
    s_mul_i32 s7, s4, 3
    s_add_u32 s7, s7, s42
    s_mul_i32 s6, s7, {64*1280}
    buffer_load_dword v159, v3, s[68:71], s6 offen
    L_POST_A:
    """)
    stamp(1)
    gettag()
    a(f"""
    s_cmp_eq_u32 s78, {R_P0X}
    s_cbranch_scc1 L_POST_XC
    s_cmp_eq_u32 s78, {R_P1X}
    s_cbranch_scc1 L_POST_Q
    """)
    a("s_branch L_MSTAGE")
    a.label("L_POST_M")
    a(f"""
    s_cmp_eq_u32 s78, {R_P0}
    s_cbranch_scc0 L_POST_ADDR
    L_POST_XC:
    """)
    a(f"""
    v_lshlrev_b32 v48, 16, v0
    s_lshl_b32 s6, s4, 13
    v_add_u32 v48, s6, v48
    v_mov_b32 v49, {OOB:#x}
    v_cmp_gt_u32 vcc, 32, v0
    v_cndmask_b32 v48, v49, v48, vcc
    s_mov_b32 s76, -1
    s_mov_b32 s77, 0
    """)
    def xc_loads():
        a(f"buffer_load_dword v50, v48, s[36:39], 0 offen offset:{O_XC} sc1")
    poll(xc_loads, ['v50'], mask='s[76:77]')
    a(f"""
    s_getreg_b32 s6, hwreg(HW_REG_XCC_ID)
    s_and_b32 s6, s6, 15
    v_lshrrev_b32 v50, 8, v50
    v_cmp_ne_u32 vcc, s6, v50
    s_and_b64 vcc, vcc, s[76:77]
    s_cselect_b32 s6, 1, 2
    v_mov_b32 {VT}, s6
    ds_write_b32 {VF}, {VT} offset:{F_FAST}
    """)
    stamp(4)
    a(f"""
    s_cmp_eq_u32 s78, {R_P0X}
    s_cbranch_scc1 L_POST_Q
    L_POST_ADDR:
    """)
    a(f"""
    v_lshrrev_b32 v1, 4, v0            ; g
    v_and_b32 v2, 15, v0               ; c
    v_lshlrev_b32 v3, 4, v2            ; 16c
    s_lshl_b32 s55, s54, 8             ; 256*b
    v_lshl_add_u32 v4, v2, 2, v1       ; column 4c+g
    v_lshlrev_b32 v4, 1, v4
    s_lshl_b32 s6, s54, 7
    v_add_u32 v9, s6, v4
    v_lshlrev_b32 v10, 1, v0
    v_add_u32 v10, s6, v10
    v_add_u32 v10, {L_H2}, v10
    s_add_u32 s6, s54, 30
    s_lshl_b32 s6, s6, 3
    s_add_u32 s6, s6, s4
    s_lshl_b32 s6, s6, 13
    s_lshl_b32 s7, s43, 8
    s_add_u32 s6, s6, s7
    v_lshlrev_b32 v22, 2, v0
    v_add_u32 v22, s6, v22
    s_mul_i32 s6, s42, 80
    s_add_u32 s6, s6, s4
    s_lshl_b32 s6, s6, 13
    s_add_u32 s7, s6, s55
    v_mov_b32 v7, {OOB:#x}
    """)
    for i in range(3):
        a(f"""
        v_add_u32 v5, {4*i}, v1
        v_cmp_gt_u32 vcc, 10, v5
        v_lshlrev_b32 v5, 16, v5
        v_add3_u32 v5, v5, v3, s7
        v_cndmask_b32 v{23+i}, v7, v5, vcc
        """)
    a(f"""
    s_lshl_b32 s6, s42, 8
    v_lshlrev_b32 v5, 2, v0
    v_add_u32 v5, s6, v5               ; rho
    v_mul_u32_u24 v6, 342, v5
    v_lshrrev_b32 v6, 16, v6           ; rho/192
    v_mul_u32_u24 v7, 192, v6
    v_sub_u32 v5, v5, v7
    v_lshlrev_b32 v5, 2, v5
    v_lshlrev_b32 v6, 3, v6
    s_lshl_b32 s6, s54, 2
    v_add_u32 v6, s6, v6
    v_lshlrev_b32 v6, 3, v6
    v_add_u32 v6, s4, v6
    v_lshlrev_b32 v26, 13, v6
    v_add_u32 v27, v26, v5             ; O address
    v_lshlrev_b32 v28, 3, v0
    s_lshl_b32 s6, s54, 9
    s_add_u32 s6, s6, {L_AO}
    v_add_u32 v28, s6, v28
    s_mov_b32 s84, 0
    s_mov_b32 s85, {8*REGION}
    s_mov_b32 s86, {16*REGION}
    s_mov_b32 s87, {24*REGION}
    s_mov_b32 s88, {O_GP}
    s_mov_b32 s90, -1
    s_mov_b32 s91, 0
    L_POST_Q:
    s_branch L_QSTAGE
    """)

    a.label("L_PV")
    tr_geom(100)
    a(f"""
    s_and_b32 s6, s3, 3
    v_xor_b32 v106, s6, v103
    v_lshlrev_b32 v106, 5, v106
    s_lshr_b32 s6, s3, 2
    s_lshl_b32 s6, s6, 7
    v_mul_u32_u24 v107, 384, v104
    v_add3_u32 v107, v107, v105, v106
    v_add_u32 v107, s6, v107
    v_add_u32 v108, 49152, v107
    v_lshlrev_b32 v109, 4, v100
    v_add_u32 v109, {L_P}, v109
    s_lshl_b32 s6, s3, 6
    v_lshlrev_b32 v110, 2, v0
    v_add_u32 v110, s6, v110
    v_mov_b32 v111, {OOB:#x}
    v_cmp_gt_u32 vcc, 16, v0
    v_cndmask_b32 v110, v111, v110, vcc
    """)
    if cfg.prea:
        spin(F_PRDY, 1)
        a(f"ds_read_b64 v[164:165], {VF} offset:{F_TAG}")
        for t in range(8): a(f"ds_read_b128 {rng(64+4*t,4)}, v109 offset:{64*t}")
    a(f"""
    s_cmp_eq_u32 s79, 4
    s_cbranch_scc0 L_PV_W0
    s_waitcnt vmcnt(4)
    s_branch L_PV_W1
    L_PV_W0:
    s_cmp_eq_u32 s79, 0
    s_cbranch_scc0 L_PV_W1
    s_waitcnt vmcnt(0)
    L_PV_W1:
    s_waitcnt lgkmcnt(0)
    """)
    if cfg.prea:
        a(f"""v_readfirstlane_b32 s97, v164
        v_readfirstlane_b32 s75, v165
        v_and_b32 {VTAG}, 0xff, v164
        v_mov_b32 {VM8}, 0xff
        s_and_b32 s95, s97, 0xff""")
    a("s_barrier")
    stamp(12)
    bufs = [48, 52, 56, 60]
    if cfg.prea:
        vb = [48, 52, 56, 60, 112, 116, 120]
        def vread(t):
            ad = 'v107' if t < 4 else 'v108'
            tt = t % 4
            base = vb[t % 7]
            a(f"ds_read_b64_tr_b16 {rng(base,2)}, {ad} offset:{12288*tt}")
            a(f"ds_read_b64_tr_b16 {rng(base+2,2)}, {ad} offset:{12288*tt+1536}")
        for t in range(7): vread(t)
        for t in range(8):
            rem = min(7, t + 6) - t
            a(f"s_waitcnt lgkmcnt({2*rem})")
            c = '0' if t == 0 else 'v[96:99]'
            a(f"v_mfma_f32_16x16x32_bf16 v[96:99], {rng(64+4*t,4)}, {rng(vb[t%7],4)}, {c}")
            if t + 7 < 8: vread(t + 7)
    else:
        a(f"ds_read_b64 v[164:165], {VF} offset:{F_TAG}")
        def vread(t):
            ad = 'v107' if t < 4 else 'v108'
            tt = t % 4
            base = bufs[t % 4]
            a(f"ds_read_b128 {rng(64+4*t,4)}, v109 offset:{64*t}")
            a(f"ds_read_b64_tr_b16 {rng(base,2)}, {ad} offset:{12288*tt}")
            a(f"ds_read_b64_tr_b16 {rng(base+2,2)}, {ad} offset:{12288*tt+1536}")
        for t in range(4): vread(t)
        for t in range(8):
            rem = min(7, t + 3) - t
            a(f"s_waitcnt lgkmcnt({3*rem})")
            c = '0' if t == 0 else 'v[96:99]'
            a(f"v_mfma_f32_16x16x32_bf16 v[96:99], {rng(64+4*t,4)}, {rng(bufs[t%4],4)}, {c}")
            if t + 4 < 8: vread(t + 4)
            if t == 1:
                a(f"""v_readfirstlane_b32 s97, v164
                v_readfirstlane_b32 s75, v165
                v_and_b32 {VTAG}, 0xff, v164
                v_mov_b32 {VM8}, 0xff
                s_and_b32 s95, s97, 0xff""")
    tagit(['v96'])
    pub_local(f"buffer_store_dword v96, v110, s[36:39], s44 offen offset:{O_OP}")
    stamp(13)
    a(f"""
    s_cmp_eq_u32 s78, {R_K}
    s_cbranch_scc1 L_K2
    s_cmp_eq_u32 s78, {R_P0}
    s_cbranch_scc1 L_POST2
    s_cmp_eq_u32 s78, {R_P1}
    s_cbranch_scc1 L_POST2
    s_cmp_eq_u32 s78, {R_KX}
    s_cbranch_scc1 L_HUB
    s_cmp_eq_u32 s78, {R_LDX}
    s_cbranch_scc1 L_HUB
    s_cmp_eq_u32 s78, {R_CHX}
    s_cbranch_scc1 L_HUB
    s_branch L_FIN
    """)
    a.label("L_K2")
    a(f"""
    s_mul_i32 s88, s4, 3
    s_add_u32 s88, s88, s42            ; f
    s_movk_i32 s89, 0xc00
    s_cmp_eq_u32 s3, 6
    s_cselect_b32 s89, 1280, s89
    s_cselect_b32 s90, s88, s43
    s_cselect_b32 s91, s43, s88
    s_lshl_b32 s90, s90, 6
    s_mul_i32 s90, s90, s89
    s_lshl_b32 s91, s91, 7
    s_add_u32 s90, s90, s91            ; soffset
    s_cmp_eq_u32 s3, 4
    s_cselect_b32 s68, s20, s22
    s_cselect_b32 s69, s21, s23
    s_cmp_eq_u32 s3, 6
    s_cselect_b32 s68, s24, s68
    s_cselect_b32 s69, s25, s69
    s_mov_b32 s70, 1966080
    s_mov_b32 s71, 0x00020000
    s_sub_u32 s91, s3, 4
    s_lshl_b32 s91, s91, 13
    s_add_u32 s91, s91, {L_MW}
    """)
    off128('v72', 'v73', 's89', 1)
    a(f"""
    s_lshl_b32 s89, s89, 3             ; 8 rows
    s_and_b32 s6, s3, 1
    s_lshl_b32 s7, s6, 1
    v_xor_b32 v106, s7, v103
    v_lshlrev_b32 v106, 5, v106
    v_lshlrev_b32 v107, 7, v104
    v_add_u32 v107, v107, v105             ; (8g+r)*128 + 8c
    v_xor_b32 v105, 32, v106
    v_add_u32 v105, v105, v107
    v_add_u32 v106, v106, v107
    s_and_b32 s7, s3, 3
    v_xor_b32 v109, s7, v103
    v_lshlrev_b32 v109, 5, v109
    v_add_u32 v107, v109, v107
    v_and_b32 v108, 1, v0
    v_lshrrev_b32 v110, 1, v100
    v_lshlrev_b32 v110, 8, v110
    v_and_b32 v111, 1, v100
    v_lshlrev_b32 v111, 6, v111
    v_and_b32 v113, 15, v0
    v_lshlrev_b32 v113, 2, v113
    v_add3_u32 v110, v110, v111, v113
    s_lshl_b32 s6, s6, 7
    v_add_u32 v110, s6, v110
    s_lshl_b32 s7, s7, 6
    s_lshr_b32 s6, s3, 2
    s_lshl_b32 s6, s6, 9
    s_add_u32 s7, s7, s6
    v_lshlrev_b32 v111, 8, v100
    v_add3_u32 v115, v111, v113, s7
    v_mov_b32 v111, {OOB:#x}
    v_cmp_gt_u32 vcc, 32, v0
    v_cndmask_b32 v115, v111, v115, vcc
    v_lshlrev_b32 v113, 4, v100            ; 16g
    v_lshlrev_b32 v112, 9, v108
    v_add_u32 v112, v112, v113
    v_add_u32 v112, {L_AO}, v112
    v_add_u32 v114, {L_W}, v106
    v_add_u32 v116, {L_W}, v105
    s_waitcnt vmcnt(1)
    s_barrier
    """)
    stamp(14)
    a(f"""
    s_cmp_gt_u32 s3, 1
    s_cbranch_scc1 L_K_NOWO
    """)
    def wread(t, base, ad):
        a(f"ds_read_b64_tr_b16 {rng(base,2)}, {ad} offset:{4096*t}")
        a(f"ds_read_b64_tr_b16 {rng(base+2,2)}, {ad} offset:{4096*t+512}")
    bA = [48, 52, 56]; bB = [120, 124, 128]
    def woread(t):
        a(f"ds_read_b128 {rng(64+4*t,4)}, v112 offset:{64*t}")
        wread(t, bA[t % 3], 'v114'); wread(t, bB[t % 3], 'v116')
    for t in range(3): woread(t)
    for t in range(8):
        rem = min(7, t + 2) - t
        a(f"s_waitcnt lgkmcnt({5*rem})")
        c0 = '0' if t == 0 else 'v[96:99]'; c1 = '0' if t == 0 else 'v[140:143]'
        a(f"v_mfma_f32_16x16x32_bf16 v[96:99], {rng(64+4*t,4)}, {rng(bA[t%3],4)}, {c0}")
        a(f"v_mfma_f32_16x16x32_bf16 v[140:143], {rng(64+4*t,4)}, {rng(bB[t%3],4)}, {c1}")
        if t + 3 < 8: woread(t + 3)
    a(f"""
    v_cndmask_b32 v96, v96, v140, s[48:49]
    v_cndmask_b32 v96, v96, v97, s[50:51]
    v_cndmask_b32 v96, v96, v141, s[52:53]
    v_bfi_b32 v96, {VM8}, {VTAG}, v96
    buffer_store_dword v96, v110, s[36:39], s44 offen offset:{O_P1} sc1
    """)
    if cfg.ffn_ack:
        a("s_waitcnt vmcnt(0)")
        addflag(F_P1ACK)
    a(f"""
    s_branch L_K_GU
    L_K_NOWO:
    s_cmp_lt_u32 s3, 4
    s_cbranch_scc1 L_K_GU
    s_cmp_eq_u32 s3, 7
    s_cbranch_scc1 L_K_GU
    """)
    if cfg.ffn_ack: spin(F_P1ACK, 2)
    for i in range(8):
        a(f"""s_add_u32 m0, s91, {1024*i}
        s_nop 0
        buffer_load_dwordx4 v{72 + (i & 1)}, s[68:71], s90 offen {NT} lds""")
        if i < 7: a("s_add_u32 s90, s90, s89")
    a("s_waitcnt vmcnt(0)")
    a.label("L_K_GU")
    stamp(15)
    a(f"""
    s_lshr_b32 s6, s3, 2
    s_lshl_b32 s7, s6, 13
    s_add_u32 s7, s7, {L_MW}
    v_add_u32 v114, s7, v107
    v_lshlrev_b32 v112, 7, v108
    v_add_u32 v112, v112, v113
    v_add_u32 v117, {L_ACT}, v112
    v_add_u32 v112, {L_H2}, v112
    s_add_u32 s6, s44, {O_GP}
    s_barrier
    """)
    stamp(16)
    a(f"""
    ds_read_b128 v[64:67], v112
    ds_read_b128 v[68:71], v112 offset:64
    """)
    wread(0, 48, 'v114'); wread(1, 52, 'v114')
    a(f"""
    s_waitcnt lgkmcnt(2)
    v_mfma_f32_16x16x32_bf16 v[96:99], v[64:67], v[48:51], 0
    s_waitcnt lgkmcnt(0)
    v_mfma_f32_16x16x32_bf16 v[96:99], v[68:71], v[52:55], v[96:99]
    v_cndmask_b32 v96, v96, v97, s[48:49]
    v_bfi_b32 v96, {VM8}, {VTAG}, v96
    """)
    pub_local("buffer_store_dword v96, v115, s[36:39], s6 offen")
    stamp(17)
    a(f"""
    s_cmp_gt_u32 s3, 1
    s_cbranch_scc1 L_FIN
    v_add_u32 v114, {L_MW + 16384}, v106
    v_add_u32 v116, {L_MW + 16384}, v105
    """)
    wread(0, 48, 'v114'); wread(1, 52, 'v114'); wread(0, 120, 'v116'); wread(1, 124, 'v116')
    a("s_barrier")
    stamp(18)
    a(f"""
    ds_read_b128 v[64:67], v117
    ds_read_b128 v[68:71], v117 offset:64
    s_waitcnt lgkmcnt(1)
    v_mfma_f32_16x16x32_bf16 v[96:99], v[64:67], v[48:51], 0
    v_mfma_f32_16x16x32_bf16 v[140:143], v[64:67], v[120:123], 0
    s_waitcnt lgkmcnt(0)
    v_mfma_f32_16x16x32_bf16 v[96:99], v[68:71], v[52:55], v[96:99]
    v_mfma_f32_16x16x32_bf16 v[140:143], v[68:71], v[124:127], v[140:143]
    v_cndmask_b32 v96, v96, v140, s[48:49]
    v_cndmask_b32 v96, v96, v97, s[50:51]
    v_cndmask_b32 v96, v96, v141, s[52:53]
    v_bfi_b32 v96, {VM8}, {VTAG}, v96
    buffer_store_dword v96, v110, s[36:39], s44 offen offset:{O_P2} sc1
    """)
    stamp(19)
    a("s_branch L_FIN")

    a.label("L_POST2")
    def a_loads(base):
        for s in range(4):
            a(f"buffer_load_dwordx4 {rng(base+4*s,4)}, v27, s[36:39], s{84+s} offen offset:{O_OP} sc1")
        for s in range(4):
            a(f"buffer_load_dwordx2 {rng(base+16+2*s,2)}, v26, s[36:39], s{84+s} offen offset:{O_ML} sc1")
    def a_consume(B):
        M = B + 16
        a(f"""
        v_max3_f32 v48, v{M}, v{M+2}, v{M+4}
        v_max_f32 v48, v48, v{M+6}
        """)
        for s in range(4): a(f"v_sub_f32 v{50+s}, v{M+2*s}, v48")
        for s in range(4): a(f"v_exp_f32 v{50+s}, v{50+s}")
        a(f"""
        v_mul_f32 v49, v50, v{M+1}
        v_mul_f32 v56, v50, v{B}
        v_mul_f32 v57, v50, v{B+1}
        v_fma_f32 v49, v51, v{M+3}, v49
        v_mul_f32 v58, v50, v{B+2}
        v_mul_f32 v59, v50, v{B+3}
        v_fma_f32 v49, v52, v{M+5}, v49
        """)
        for i in range(4): a(f"v_fma_f32 v{56+i}, v51, v{B+4+i}, v{56+i}")
        a(f"v_fma_f32 v49, v53, v{M+7}, v49")
        for i in range(4): a(f"v_fma_f32 v{56+i}, v52, v{B+8+i}, v{56+i}")
        a("v_rcp_f32 v49, v49")
        for i in range(4): a(f"v_fma_f32 v{56+i}, v53, v{B+12+i}, v{56+i}")
    poll2(a_loads, 8, 64, 88, lambda b: pick(vr(b, 16), 4) + pick(vr(b+16, 8), 2), a_consume, itstamp=31, space=cfg.sp_l)
    stamp(14)
    for i in range(4): a(f"v_mul_f32 v{56+i}, v{56+i}, v49")
    a(f"""
    v_cvt_pk_bf16_f32 v60, v56, v57
    v_cvt_pk_bf16_f32 v61, v58, v59
    ds_write_b64 v28, v[60:61]
    s_waitcnt lgkmcnt(0)
    s_barrier
    """)
    stamp(15)
    def h2_loads():
        a(f"buffer_load_dword v64, v22, s[36:39], 0 offen offset:{O_H2} sc1")
    if cfg.dh: a(f"s_sleep {cfg.dh}")
    sv = cfg.poll_sleep; cfg.poll_sleep = 1
    poll(h2_loads, ['v64'], itstamp=33)
    cfg.poll_sleep = sv
    stamp(17)
    a(f"""
    v_lshrrev_b32 v64, 16, v64
    ds_write_b16 v10, v64
    s_waitcnt lgkmcnt(0)
    s_barrier
    """)
    stamp(18)
    def gp_loads(base):
        for mat in range(2):
            for i in range(3):
                a(f"buffer_load_dwordx4 {rng(base+12*mat+4*i,4)}, v{23+i}, s[36:39], s88 offen offset:{512*mat} sc1")
    def gp_consume(base):
        for mat in range(2):
            B = base + 12*mat; D = 64 + 4*mat
            for h in range(2): pkadd(D+2*h, B+2*h, B+4+2*h)
            for h in range(2): pkadd(D+2*h, D+2*h, B+8+2*h)
    if cfg.dg: a(f"s_sleep {cfg.dg}")
    poll2(gp_loads, 6, 80, 112, lambda b: pick(vr(b, 8) + vr(b+12, 8), 4), gp_consume, itstamp=34, space=cfg.sp_l,
          extra=lambda b: (pick(vr(b+8, 4) + vr(b+20, 4), 4), 's[90:91]'))
    stamp(19)
    transred(64); transred(68)
    K0 = 0.7978845608028654; K1 = 0.044715
    a(f"""
    v_cvt_pk_bf16_f32 v72, v64, v68
    v_lshlrev_b32 v64, 16, v72         ; gate
    v_and_b32 v68, 0xffff0000, v72     ; up
    v_mul_f32 v72, v64, v64
    v_mul_f32 v72, {fl(K1)}, v72
    v_add_f32 v72, 1.0, v72
    v_mul_f32 v72, v72, v64
    v_mul_f32 v72, {fl(-2*K0*LOG2E)}, v72
    v_exp_f32 v72, v72
    v_add_f32 v72, 1.0, v72
    v_rcp_f32 v72, v72
    v_mul_f32 v64, v64, v72
    v_cvt_pk_bf16_f32 v64, v64, v64
    v_lshlrev_b32 v64, 16, v64
    v_mul_f32 v64, v64, v68
    v_cvt_pk_bf16_f32 v64, v64, v64
    v_add_u32 v73, {L_ACT}, v9
    ds_write_b16 v73, v64
    s_waitcnt lgkmcnt(0)
    s_barrier
    """)
    stamp(20)
    a("s_branch L_FIN")

    a.label("L_HUB")
    srd(56, 8, 2560)
    srd(60, 30, 2560)
    a(f"""
    s_setprio 3
    s_sub_u32 s54, s5, 30              ; b
    v_lshrrev_b32 v1, 4, v0            ; g
    v_and_b32 v2, 15, v0               ; c
    v_lshlrev_b32 v3, 4, v2            ; 16c
    s_lshl_b32 s55, s54, 8             ; 256*b
    v_lshl_add_u32 v4, v2, 2, v1       ; column 4c+g
    s_lshl_b32 s6, s3, 8
    v_lshlrev_b32 v9, 2, v4
    v_add_u32 v9, s6, v9
    v_lshlrev_b32 v4, 1, v4
    s_mul_i32 s6, s54, 1280
    s_lshl_b32 s7, s3, 7
    s_add_u32 s6, s6, s7
    v_add_u32 v11, s6, v4
    buffer_load_ushort v8, v11, s[56:59], 0 offen
    buffer_load_ushort v10, v11, s[60:63], 0 offen
    """)
    for qi, cb0 in enumerate((20, 30, 40, 50)):
        odd = 1 if cb0 >= 30 else 0
        a(f"""
        s_add_u32 s6, s3, {cb0 - 30*odd}
        s_lshl_b32 s6, s6, 3
        s_add_u32 s6, s6, {odd}
        s_lshl_b32 s6, s6, 13
        s_add_u32 s6, s6, s55
        v_lshlrev_b32 v5, 14, v1
        v_add3_u32 v{12+qi}, v5, v3, s6
        """)
    def mod_loads():
        for qi in range(4):
            a(f"buffer_load_dwordx4 {rng(48+4*qi,4)}, v{12+qi}, s[36:39], 0 offen offset:{O_MP} sc1")
    for i in range(6):
        a(f"""
        v_add_u32 v5, {4*i}, v1
        v_mul_u32_u24 v6, 86, v5
        v_lshrrev_b32 v6, 8, v6
        v_mul_u32_u24 v7, 3, v6
        v_sub_u32 v5, v5, v7
        v_mul_u32_u24 v5, 10, v5
        v_add_u32 v5, s3, v5
        v_lshlrev_b32 v5, 3, v5
        v_add_u32 v5, v5, v6
        v_lshlrev_b32 v5, 13, v5
        v_add3_u32 v{16+i}, v5, v3, s55
        """)
    a(f"""
    v_lshrrev_b32 v5, 5, v0
    v_lshlrev_b32 v5, 2, v5
    s_lshl_b32 s6, s3, 3
    s_add_u32 s6, s6, {L_S}
    v_add_u32 v29, s6, v5
    v_lshlrev_b32 v28, 3, v2
    v_add_u32 v28, {L_S}, v28
    s_mov_b32 s92, 0x03ff03ff
    s_mov_b32 s93, 0x03ff03ff
    """)
    poll(mod_loads, pick(vr(48, 16), 4), itstamp=30)
    for qi in range(4): transred(48 + 4*qi)
    a("""v_mov_b32 v32, v48
    v_mov_b32 v33, v52
    v_mov_b32 v34, v56
    v_mov_b32 v35, v60""")
    bfround(vr(32, 4), 40)
    a("v_add_f32 v34, 1.0, v34")
    bfround(['v34'], 40)
    a("v_lshlrev_b32 v30, 16, v8")
    stamp(14)
    PA, PB = 112, 136
    def p_loads(off):
        def f(base):
            for i in range(6):
                a(f"buffer_load_dwordx4 {rng(base+4*i,4)}, v{16+i}, s[36:39], 0 offen offset:{off} sc1")
        return f
    def p_chk(base): return pick(vr(base, 24), 4)
    def p_consume(base):
        for h in range(2):
            pkadd(64+2*h, base+2*h, base+4+2*h)
            pkadd(68+2*h, base+8+2*h, base+12+2*h)
            pkadd(72+2*h, base+16+2*h, base+20+2*h)
        for h in range(2): pkadd(64+2*h, 64+2*h, 68+2*h)
        for h in range(2): pkadd(64+2*h, 64+2*h, 72+2*h)
        transred(64)
    save = cfg.pipe; cfg.pipe = cfg.pipe_r
    poll2(p_loads(O_P1), 6, PA, PB, p_chk, p_consume, itstamp=32, space=cfg.sp_r)
    cfg.pipe = save
    stamp(16)
    a(f"""
    v_cvt_pk_bf16_f32 v64, v64, v64
    v_lshlrev_b32 v64, 16, v64
    v_mul_f32 v64, v32, v64
    v_cvt_pk_bf16_f32 v64, v64, v64
    v_lshlrev_b32 v64, 16, v64
    v_add_f32 v30, v30, v64
    v_cvt_pk_bf16_f32 v30, v30, v30
    v_lshlrev_b32 v30, 16, v30         ; x1
    v_mul_f32 v65, v30, v30
    v_mov_b32 v64, v30
    """)
    row16_sum(['v64', 'v65'])
    a(f"""
    v_permlane32_swap_b32 v64, v65
    v_add_f32 v64, v64, v65
    v_mov_b32 v65, v64
    v_permlane16_swap_b32 v64, v65
    v_add_f32 v64, v64, v65
    s_mov_b32 exec_lo, 1
    s_mov_b32 exec_hi, 1
    ds_write_b32 v29, v64
    s_mov_b64 exec, -1
    s_waitcnt lgkmcnt(0)
    s_barrier
    ds_read_b64 v[68:69], v28
    s_waitcnt lgkmcnt(0)
    v_cndmask_b32 v68, 0, v68, s[92:93]
    v_cndmask_b32 v69, 0, v69, s[92:93]
    """)
    stamp(17)
    row16_sum(['v68', 'v69'])
    a(f"""
    v_mul_f32 v68, {fl(1/640)}, v68
    v_mul_f32 v69, {fl(1/640)}, v69
    v_fma_f32 v69, -v68, v68, v69
    v_max_f32 v69, 0, v69
    """)
    ln_finish('v68', 'v69', 70)
    a(f"""
    v_rcp_f32 v71, v69
    v_sub_f32 v64, v30, v68
    v_cvt_pk_bf16_f32 v64, v64, v64
    v_lshlrev_b32 v64, 16, v64
    """)
    fdiv('v72', 'v64', 'v71', 'v69', 'v70')
    a(f"""
    v_cvt_pk_bf16_f32 v72, v72, v72
    v_lshlrev_b32 v72, 16, v72
    v_mul_f32 v72, v72, v34
    v_cvt_pk_bf16_f32 v72, v72, v72
    v_lshlrev_b32 v72, 16, v72
    v_add_f32 v72, v72, v33
    v_cvt_pk_bf16_f32 v72, v72, v72
    v_lshlrev_b32 v72, 16, v72
    v_bfi_b32 v72, {VM8}, {VTAG}, v72
    """)
    pub_local(f"buffer_store_dword v72, v9, s[36:39], s44 offen offset:{O_H2}")
    stamp(18)
    a(f"""
    s_and_b32 s6, s3, 7
    s_cmp_eq_u32 s6, s4
    s_cbranch_scc0 L_FIN
    """)
    cfg.pipe = cfg.pipe_c
    a("s_waitcnt vmcnt(0)")
    poll2(p_loads(O_P2), 6, PA, PB, p_chk, p_consume, itstamp=35, space=cfg.sp_r)
    cfg.pipe = save
    stamp(21)
    a(f"""
    v_cvt_pk_bf16_f32 v64, v64, v64
    v_lshlrev_b32 v64, 16, v64
    v_mul_f32 v64, v35, v64
    v_cvt_pk_bf16_f32 v64, v64, v64
    v_lshlrev_b32 v64, 16, v64
    v_add_f32 v64, v30, v64
    v_cvt_pk_bf16_f32 v64, v64, v64
    buffer_store_short v64, v11, s[60:63], 0 offen
    s_or_b32 s6, s54, s3
    s_cmp_eq_u32 s6, 0
    s_cbranch_scc0 L_NOEPOCH
    ds_read_b32 v47, {VF} offset:{F_EPOCH}
    v_mov_b32 v2, {EPOCH_OFF}
    s_waitcnt lgkmcnt(0)
    s_mov_b64 exec, 1
    buffer_store_dword v47, v2, s[36:39], 0 offen sc1
    s_mov_b64 exec, -1
    L_NOEPOCH:
    """)
    stamp(22)
    a.label("L_FIN")
    prof_out()
    a.label("L_END")
    a("s_endpgm")
    a.label("L_CODE_END")
    body = a.text()
    body += "    .p2align 10, 0\n" if False else ""
    body += f"L_PAD_START:\n    .fill ((1024 - ((L_PAD_START - {KNAME}) % 1024)) % 1024) / 4, 4, 0xbf810000\nL_PAD_END:\n"

    hdr = open('adaLN_cond__sliding_block_cached__geglu_ffn__decode.s.ref').read().split('; Override')[0]
    return f"""{hdr}; Generated by gen/gen3.py (hand-designed schedule; see that file for the structure).
; @launch grid=(256,1,1) block=(768,1,1) lds={LDS_BYTES}
.amdgcn_target "amdgcn-amd-amdhsa--gfx950"
.text
.globl {KNAME}
.p2align 8
.type {KNAME},@function
{KNAME}:
{body}
.section .rodata,"a"
.p2align 6
.amdhsa_kernel {KNAME}
  .amdhsa_next_free_vgpr 168
  .amdhsa_next_free_sgpr 102
  .amdhsa_accum_offset 168
  .amdhsa_group_segment_fixed_size 0
  .amdhsa_kernarg_size 112
  .amdhsa_user_sgpr_count 2
  .amdhsa_user_sgpr_kernarg_segment_ptr 1
  .amdhsa_system_sgpr_workgroup_id_x 1
  .amdhsa_float_denorm_mode_32 3
.end_amdhsa_kernel
"""

if __name__ == "__main__":
    class C(Cfg): pass
    for arg in sys.argv[2:]:
        k, v = arg.split('=')
        setattr(C, k, int(v))
    import subprocess, re
    def size_of(text):
        open('_g.s', 'w').write(text)
        subprocess.run(['clang', '-x', 'assembler', '-target', 'amdgcn-amd-amdhsa', '-mcpu=gfx950', '-c', '_g.s', '-o', '_g.o'], check=True)
        out = subprocess.run(['llvm-readelf', '-S', '_g.o'], capture_output=True, text=True).stdout
        m = re.search(r'\.text\s+PROGBITS\s+\S+\s+\S+\s+(\S+)', out)
        return int(m.group(1), 16)
    C.npiece = 16
    n = size_of(gen(C)) // 1024
    C.npiece = n
    text = gen(C)
    assert size_of(text) // 1024 == n
    open(sys.argv[1], 'w').write(text)
```

```python
import sys, struct
from asmlib import Asm

KNAME = "adaLN_cond__sliding_block_cached__geglu_ffn__decode_kernel"
REGION = 8192
O_MP, O_QP, O_OP, O_ML, O_XC, O_ST, O_P1, O_P2, O_GP = 0, 512, 2048, 2816, 2880, 2944, 3072, 3584, 4096
O_H2 = 3072
EPOCH_OFF = 256 * REGION
WS_BYTES = 256 * REGION + 128
PROF_OFF = 4 << 20
L_V = 0
L_W = 98304
L_SC = 131072
L_H = 131712
L_Q = 132032
L_S = 132416
L_P = 133440
L_AO = 133952
L_H2 = 134976
L_ACT = 135232
L_FLG = 135488
L_MW = 135680
LDS_BYTES = L_MW + 24576
F_KGO, F_MLAND, F_WQLAND, F_SCRDY, F_QRDY, F_SCNT, F_TAG, F_FAST, F_HRDY, F_QS, F_EPOCH, F_PRDY, F_P1ACK, F_KISS = [4 * i for i in range(14)]
OOB = 0x80000000
LOG2E = 1.4426950408889634
SCALE = 192 ** -0.5
def f2u(x): return struct.unpack('<I', struct.pack('<f', x))[0]
def fl(x): return hex(f2u(x))
VF, VT, VM8, VTAG, VC, VC2, VP1, VP0 = 'v160', 'v161', 'v162', 'v163', 'v164', 'v165', 'v166', 'v167'
R_K, R_KX, R_LD, R_CH, R_P0, R_P0X, R_P1, R_P1X, R_LDX, R_CHX = 1, 2, 3, 4, 5, 6, 7, 8, 9, 10

class Cfg:
    prof = 0
    WL = 32
    WK = 3
    WV = 4
    SIDX = 20
    spin_max = 1 << 20
    poll_max = 1 << 15
    poll_sleep = 0
    fast = 1
    nt = 1
    pipe = 0
    pipe_r = 0
    sel = 1
    db1 = 0
    dc = 0
    pipe_c = 0
    dm = 0
    dq = 0
    dg = 0
    dh = 0
    ffn_ack = 1
    prea = 1
    WVB = 0
    WVL = 11
    vstart = 8
    pf_top = 1
    npiece = 1
    pf_chunks = 2
    sp_m = 16
    sp_q = 16
    sp_l = 1
    sp_r = 2
    chk4 = 0

def gen(cfg=Cfg):
    a = Asm()
    NT = 'nt' if cfg.nt else ''
    def stamp(i):
        if cfg.prof == 1 or (cfg.prof == 2 and i in (0, 12, 22)):
            a(f"""
            s_memrealtime s[98:99]
            s_waitcnt lgkmcnt(0)
            v_writelane_b32 {VP0}, s98, {i}
            """)
    def prof_out():
        if cfg.prof:
            a(f"""
            s_mul_i32 s6, s2, 12
            s_add_u32 s6, s6, s3
            s_lshl_b32 s6, s6, 8
            s_add_u32 s6, s6, {PROF_OFF}
            v_lshlrev_b32 {VP1}, 2, v0
            v_add_u32 {VP1}, s6, {VP1}
            s_mov_b32 s38, 0x7fffffff
            buffer_store_dword {VP0}, {VP1}, s[36:39], 0 offen
            s_mov_b32 s38, {WS_BYTES}
            """)
    def spin(flag, target):
        L = a.new('SP'); D = a.new('SD')
        a(f"""
        s_mov_b32 s96, 0
        {L}:
        ds_read_b32 {VT}, {VF} offset:{flag}
        s_add_u32 s96, s96, 1
        s_waitcnt lgkmcnt(0)
        v_readfirstlane_b32 s97, {VT}
        s_cmp_ge_u32 s97, {target}
        s_cbranch_scc1 {D}
        s_cmp_gt_u32 s96, {cfg.spin_max}
        s_cbranch_scc1 {D}
        s_sleep 1
        s_branch {L}
        {D}:
        """)
    def setflag(flag, val=1):
        a(f"""
        v_mov_b32 {VT}, {val}
        ds_write_b32 {VF}, {VT} offset:{flag}
        """)
    def addflag(flag):
        a(f"""
        v_mov_b32 {VT}, 1
        s_mov_b64 exec, 1
        ds_add_u32 {VF}, {VT} offset:{flag}
        s_mov_b64 exec, -1
        """)
    def pick(regs, step):
        regs = list(regs)
        return regs if cfg.chk4 else regs[step-1::step]
    def tagcheck(regs, mask=None, extra=None):
        r = list(regs)
        a(f"v_xor_b32 {VC}, s95, {r[0]}")
        for x in r[1:]:
            a(f"v_bitop3_b32 {VC}, {VC}, {x}, s95 bitop3:0xf6")
        if extra:
            er, em = extra
            a(f"v_xor_b32 {VC2}, s95, {er[0]}")
            for x in er[1:]:
                a(f"v_bitop3_b32 {VC2}, {VC2}, {x}, s95 bitop3:0xf6")
            a(f"v_cndmask_b32 {VC2}, 0, {VC2}, {em}")
            a(f"v_or_b32 {VC}, {VC}, {VC2}")
        a(f"v_and_b32 {VC}, 0xff, {VC}")
        a(f"v_cmp_ne_u32 vcc, 0, {VC}")
        a(f"s_and_b64 vcc, vcc, {mask if mask else 'exec'}")
    def poll(loadfn, regs, mask=None, itstamp=None, extra=None):
        L = a.new('PL'); D = a.new('PD')
        a("s_mov_b32 s96, 0")
        a.label(L)
        loadfn()
        a("s_add_u32 s96, s96, 1")
        a("s_waitcnt vmcnt(0)")
        tagcheck(regs, mask, extra)
        a(f"""
        s_cbranch_scc0 {D}
        s_cmp_gt_u32 s96, {cfg.poll_max}
        s_cbranch_scc1 {D}
        """)
        if cfg.poll_sleep: a(f"s_sleep {cfg.poll_sleep}")
        a(f"""
        s_branch {L}
        {D}:
        """)
        if cfg.prof and itstamp is not None:
            a(f"v_writelane_b32 {VP0}, s96, {itstamp}")
    def poll2(loadfn, nloads, baseA, baseB, chk, consume, itstamp=None, space=2, mask=None, extra=None):
        ex = (lambda b: extra(b)) if extra else (lambda b: None)
        if not cfg.pipe:
            poll(lambda: loadfn(baseA), chk(baseA), itstamp=itstamp, mask=mask, extra=ex(baseA)); consume(baseA); return
        L = a.new('QL'); DA = a.new('QA'); DB = a.new('QB'); J = a.new('QJ')
        a("s_mov_b32 s96, 0")
        loadfn(baseA)
        if space: a(f"s_sleep {space}")
        a.label(L)
        loadfn(baseB)
        a("s_add_u32 s96, s96, 1")
        a(f"s_waitcnt vmcnt({nloads})")
        tagcheck(chk(baseA), mask, ex(baseA))
        a(f"s_cbranch_scc0 {DA}")
        loadfn(baseA)
        a(f"s_waitcnt vmcnt({nloads})")
        tagcheck(chk(baseB), mask, ex(baseB))
        a(f"""s_cbranch_scc0 {DB}
        s_cmp_gt_u32 s96, {cfg.poll_max}
        s_cbranch_scc0 {L}
        {DB}:""")
        consume(baseB)
        a(f"s_branch {J}")
        a.label(DA)
        consume(baseA)
        a.label(J)
        if cfg.prof == 1 and itstamp is not None:
            a(f"v_writelane_b32 {VP0}, s96, {itstamp}")
    MP_ = [64, 66, 68, 70, 72, 76, 80, 82]
    def poll_sel(loads, itstamp=None, sleep=0, pairs=None):
        pairs = pairs or MP_
        L = a.new('SL'); D = a.new('SE')
        for t, _, _ in loads: a(t)
        a("s_mov_b32 s96, 0")
        a.label(L)
        a("s_add_u32 s96, s96, 1")
        a("s_waitcnt vmcnt(0)")
        for i, (t, r, m) in enumerate(loads):
            a(f"v_cmp_ne_u32_sdwa s[{pairs[i]}:{pairs[i]+1}], {r}, s95 src0_sel:BYTE_0 src1_sel:BYTE_0")
        for i, (t, r, m) in enumerate(loads):
            if m: a(f"s_and_b64 s[{pairs[i]}:{pairs[i]+1}], s[{pairs[i]}:{pairs[i]+1}], {m}")
        if len(loads) == 1:
            a(f"s_cmp_lg_u64 s[{pairs[0]}:{pairs[0]+1}], 0")
        else:
            a(f"s_or_b64 vcc, s[{pairs[0]}:{pairs[0]+1}], s[{pairs[1]}:{pairs[1]+1}]")
            for i in range(2, len(loads)): a(f"s_or_b64 vcc, vcc, s[{pairs[i]}:{pairs[i]+1}]")
        a(f"""s_cbranch_scc0 {D}
        s_cmp_gt_u32 s96, {cfg.poll_max}
        s_cbranch_scc1 {D}""")
        if sleep: a(f"s_sleep {sleep}")
        for i, (t, r, m) in enumerate(loads):
            S = a.new('SK')
            a(f"s_cmp_lg_u64 s[{pairs[i]}:{pairs[i]+1}], 0")
            a(f"s_cbranch_scc0 {S}")
            a(t)
            a.label(S)
        a(f"s_branch {L}")
        a.label(D)
        if cfg.prof == 1 and itstamp is not None:
            a(f"v_writelane_b32 {VP0}, s96, {itstamp}")
    def tagit(regs):
        for r in regs: a(f"v_bfi_b32 {r}, {VM8}, {VTAG}, {r}")
    def gettag():
        spin(F_TAG, 0x100)
        a("s_and_b32 s95, s97, 0xff")
        a(f"v_mov_b32 {VM8}, 0xff")
        a(f"v_mov_b32 {VTAG}, s95")
    def pub_local(instr):
        if not cfg.fast:
            a(instr + " sc1"); return
        F = a.new('PF'); D = a.new('PE')
        a(f"""
        s_cmp_eq_u32 s75, 2
        s_cbranch_scc1 {F}
        {instr} sc1
        s_branch {D}
        {F}:
        {instr}
        {D}:
        """)
    def vr(base, n): return [f"v{base+i}" for i in range(n)]
    def rng(base, n): return f"v[{base}:{base+n-1}]"
    def srd(s, ptr, size):
        a(f"""
        s_mov_b32 s{s}, s{ptr}
        s_mov_b32 s{s+1}, s{ptr+1}
        s_mov_b32 s{s+2}, {size}
        s_mov_b32 s{s+3}, 0x00020000
        """)
    def xrow16_sum(regs, t, op='v_add_f32'):
        for sw in ('v_permlane16_swap_b32', 'v_permlane32_swap_b32'):
            for i, r in enumerate(regs): a(f"v_mov_b32 v{t+i}, {r}")
            for i, r in enumerate(regs): a(f"{sw} v{t+i}, {r}")
            for i, r in enumerate(regs): a(f"{op} {r}, {r}, v{t+i}")
    def transred(b):
        a(f"""v_permlane32_swap_b32 v{b}, v{b+2}
        v_permlane32_swap_b32 v{b+1}, v{b+3}
        v_add_f32 v{b}, v{b}, v{b+2}
        v_add_f32 v{b+1}, v{b+1}, v{b+3}
        v_permlane16_swap_b32 v{b}, v{b+1}
        v_add_f32 v{b}, v{b}, v{b+1}""")
    def row16_sum(regs, op='v_add_f32'):
        for rot in (8, 4, 2, 1):
            for r in regs: a(f"{op}_dpp {r}, {r}, {r} row_ror:{rot} row_mask:0xf bank_mask:0xf")
    def bfround(regs, t):
        regs = list(regs)
        for i in range(0, len(regs), 2):
            if i + 1 < len(regs):
                a(f"""v_cvt_pk_bf16_f32 v{t}, {regs[i]}, {regs[i+1]}
                v_lshlrev_b32 {regs[i]}, 16, v{t}
                v_and_b32 {regs[i+1]}, 0xffff0000, v{t}""")
            else:
                a(f"""v_cvt_pk_bf16_f32 {regs[i]}, {regs[i]}, {regs[i]}
                v_lshlrev_b32 {regs[i]}, 16, {regs[i]}""")
    def unpack(src, lo, hi):
        a(f"""v_lshlrev_b32 {lo}, 16, {src}
        v_and_b32 {hi}, 0xffff0000, {src}""")
    def fdiv(dst, num, den_rcp, den, t):
        a(f"""v_mul_f32 {dst}, {num}, {den_rcp}
        v_fma_f32 {t}, -{dst}, {den}, {num}
        v_fma_f32 {dst}, {t}, {den_rcp}, {dst}""")
    def ln_finish(mean, var, t):
        bfround([mean, var], t)
        a(f"v_add_f32 {var}, {fl(1e-5)}, {var}")
        bfround([var], t)
        a(f"v_sqrt_f32 {var}, {var}")
        bfround([var], t)
    def pkadd(d, x, y): a(f"v_pk_add_f32 {rng(d,2)}, {rng(x,2)}, {rng(y,2)}")
    def tr_geom(b):
        a(f"""
        v_lshrrev_b32 v{b}, 4, v0
        v_lshrrev_b32 v{b+1}, 2, v0
        v_and_b32 v{b+1}, 3, v{b+1}
        v_and_b32 v{b+2}, 3, v0
        v_lshrrev_b32 v{b+3}, 1, v{b+1}
        v_and_b32 v{b+4}, 1, v{b}
        v_lshlrev_b32 v{b+4}, 1, v{b+4}
        v_or_b32 v{b+3}, v{b+3}, v{b+4}
        v_lshlrev_b32 v{b+4}, 3, v{b}
        v_add_u32 v{b+4}, v{b+4}, v{b+1}
        v_lshlrev_b32 v{b+5}, 3, v{b+2}
        """)
    def off128(dst_even, dst_odd, rs, t):
        a(f"""
        v_lshrrev_b32 v{t}, 3, v0
        v_and_b32 v{t+1}, 7, v0
        v_lshrrev_b32 v{t+2}, 1, v{t}
        v_and_b32 v{t+2}, 1, v{t+2}
        v_lshrrev_b32 v{t+3}, 1, v{t+1}
        v_xor_b32 v{t+3}, v{t+3}, v{t+2}
        v_lshlrev_b32 v{t+3}, 5, v{t+3}
        v_and_b32 v{t+2}, 1, v{t+1}
        v_lshlrev_b32 v{t+2}, 4, v{t+2}
        v_or_b32 v{t+3}, v{t+3}, v{t+2}
        """)
        if isinstance(rs, int): a(f"v_mul_u32_u24 {dst_even}, {rs}, v{t}")
        else: a(f"v_mul_lo_u32 {dst_even}, v{t}, {rs}")
        a(f"""
        v_add_u32 {dst_even}, {dst_even}, v{t+3}
        v_xor_b32 {dst_odd}, 64, {dst_even}
        """)
    def off384(even0, odd0, rs, t):
        for ph in range(3):
            a(f"""
            v_add_u32 v{t}, {64*ph}, v0
            v_mul_u32_u24 v{t+1}, 2731, v{t}
            v_lshrrev_b32 v{t+1}, 16, v{t+1}
            v_mul_u32_u24 v{t+2}, 24, v{t+1}
            v_sub_u32 v{t+2}, v{t}, v{t+2}
            v_lshrrev_b32 v{t+3}, 1, v{t+1}
            v_and_b32 v{t+3}, 1, v{t+3}
            v_lshrrev_b32 v{t}, 1, v{t+2}
            v_xor_b32 v{t}, v{t}, v{t+3}
            v_lshlrev_b32 v{t}, 5, v{t}
            v_and_b32 v{t+2}, 1, v{t+2}
            v_lshlrev_b32 v{t+2}, 4, v{t+2}
            v_or_b32 v{t}, v{t}, v{t+2}
            v_mul_u32_u24 v{t+2}, {rs}, v{t+1}
            v_add_u32 v{even0+ph}, v{t+2}, v{t}
            v_xor_b32 v{odd0+ph}, 64, v{even0+ph}
            """)

    a(f"""
    s_cmp_ge_u32 s2, 256
    s_cbranch_scc1 L_END
    s_load_dwordx16 s[8:23], s[0:1], 0
    s_load_dwordx8 s[24:31], s[0:1], 64
    s_load_dwordx4 s[32:35], s[0:1], 96
    v_lshrrev_b32 v1, 6, v0
    v_and_b32 v0, 63, v0
    s_getpc_b64 s[56:57]
    .Lpcref:
    s_lshr_b32 s5, s2, 3
    v_readfirstlane_b32 s3, v1
    s_sub_u32 s56, s56, .Lpcref-{KNAME}
    s_subb_u32 s57, s57, 0
    s_and_b32 s4, s2, 7
    """)
    if cfg.pf_top:
        a(f"""
        s_cmp_ge_u32 s3, {cfg.pf_chunks}
        s_cbranch_scc1 L_NOPF
        s_mul_i32 s6, s5, {cfg.pf_chunks}
        s_add_u32 s6, s6, s3
        s_mul_i32 s7, s6, {(65536 + cfg.npiece - 1)//cfg.npiece}
        s_lshr_b32 s7, s7, 16
        s_mul_i32 s7, s7, {cfg.npiece}
        s_sub_u32 s6, s6, s7
        s_lshl_b32 s6, s6, 10
        v_lshl_add_u32 v2, v0, 4, s6
        global_load_dwordx4 v[152:155], v2, s[56:57]
        L_NOPF:
        """)
    a(f"v_mov_b32 {VF}, {L_FLG}")
    if cfg.prof: a(f"v_mov_b32 {VP0}, 0")
    for r in (22, 23, 24, 25, 26, 27): a(f"v_mov_b32 v{r}, {OOB:#x}")
    a(f"""
    s_lshr_b32 s40, s5, 3              ; hl
    s_lshl_b32 s41, s4, 2
    s_add_u32 s41, s41, s40            ; head
    s_mul_i32 s42, s5, 26
    s_lshr_b32 s42, s42, 8             ; q10 = j/10
    s_mul_i32 s43, s42, 10
    s_sub_u32 s43, s5, s43             ; kj = j%10
    s_lshl_b32 s44, s2, 13
    s_lshr_b32 s45, s5, 2
    s_and_b32 s45, s45, 1
    s_and_b32 s46, s5, 7               ; r
    s_lshl_b32 s6, s45, 5
    s_add_u32 s6, s6, s41
    s_mul_i32 s47, s6, 1572864
    s_and_b32 s6, s5, 3
    s_mul_i32 s6, s6, 98304
    s_add_u32 s47, s47, s6
    s_add_u32 s47, s47, 1179648
    s_mov_b32 s48, 0xffff0000
    s_mov_b32 s49, 0
    s_mov_b32 s50, 0
    s_mov_b32 s51, 0x0000ffff
    s_mov_b32 s52, 0
    s_mov_b32 s53, 0xffff0000
    s_mov_b32 s75, 1
    s_mov_b32 s79, 63
    s_cmp_lt_u32 s3, 8
    s_cbranch_scc1 L_KWAVE
    s_cmp_eq_u32 s3, 9
    s_cbranch_scc1 L_CHAIN
    s_cmp_gt_u32 s3, 9
    s_cbranch_scc1 L_POST
    """)
    def start_sync():
        a("s_waitcnt lgkmcnt(0)")
        a("s_barrier")
        stamp(0)
        srd(36, 34, WS_BYTES)

    W = cfg.WL
    a(f"s_mov_b32 s78, {R_LD}")
    a("s_setprio 2")
    off128('v10', 'v11', 7680, 1)
    off384(12, 15, 12288, 1)
    a(f"""
    s_lshr_b32 s6, s4, 1
    s_mul_i32 s84, s6, {160*7680}
    s_and_b32 s6, s4, 1
    s_mul_i32 s6, s6, 30
    s_add_u32 s6, s6, s5
    s_lshl_b32 s6, s6, 7
    s_add_u32 s84, s84, s6
    s_mul_i32 s87, s46, {80*12288}
    s_mul_i32 s6, s41, 384
    s_add_u32 s87, s87, s6
    s_mov_b32 s85, {L_MW}
    s_mov_b32 s86, 0
    """)
    start_sync()
    srd(56, 28, 4915200)
    srd(60, 14, 7864320)
    a(f"""
    s_cmp_lt_u32 s5, 30
    s_cbranch_scc1 L_LD_M
    s_mov_b32 s78, {R_LDX}
    s_branch L_LD_Q0
    L_LD_M:
    """)
    for par in range(2):
        a(f"""s_waitcnt vmcnt({W-1})
        s_mov_b32 m0, s85
        s_add_u32 s85, s85, 1024
        buffer_load_dwordx4 v{10+par}, s[56:59], s84 offen {NT} lds
        s_add_u32 s84, s84, {8*7680}""")
    a(f"""
    s_add_u32 s86, s86, 1
    s_cmp_lt_u32 s86, 10
    s_cbranch_scc1 L_LD_M
    L_LD_Q0:
    s_mov_b32 s85, {L_W}
    s_mov_b32 s86, 0
    L_LD_Q:
    """)
    for par in range(2):
        for ph in range(3):
            a(f"""s_waitcnt vmcnt({W-1})
            s_mov_b32 m0, s85
            s_add_u32 s85, s85, 1024
            buffer_load_dwordx4 v{12+3*par+ph}, s[60:63], s87 offen {NT} lds""")
        a(f"s_add_u32 s87, s87, {8*12288}")
    assert W >= 31
    a(f"""
    s_add_u32 s86, s86, 1
    s_cmp_lt_u32 s86, 5
    s_cbranch_scc1 L_LD_Q
    """)
    setflag(F_KGO)
    stamp(1)
    a("s_waitcnt vmcnt(30)")
    setflag(F_MLAND); stamp(2)
    a("s_waitcnt vmcnt(0)")
    setflag(F_WQLAND)
    stamp(3)
    a("s_mov_b32 s82, 0")
    a("s_branch L_VLOAD")

    a.label("L_KWAVE")
    a(f"""
    s_mov_b32 s78, {R_K}
    s_cmp_lt_u32 s5, 30
    s_cbranch_scc1 L_K_ROLE
    s_mov_b32 s78, {R_KX}
    L_K_ROLE:
    """)
    a(f"""
    s_cmp_lg_u32 s3, 0
    s_cbranch_scc1 L_NOZ
    v_mov_b32 v2, 0
    v_lshlrev_b32 v3, 2, v0
    v_add_u32 v3, {L_FLG}, v3
    s_mov_b64 exec, 0xffff
    ds_write_b32 v3, v2
    s_mov_b64 exec, -1
    L_NOZ:
    v_lshrrev_b32 v1, 3, v0
    v_mul_u32_u24 v1, 384, v1
    v_and_b32 v2, 7, v0
    v_lshlrev_b32 v2, 4, v2
    v_add_u32 v1, v1, v2
    s_mul_i32 s84, s3, 12288
    s_add_u32 s84, s84, s47
    """)
    KV = 8
    start_sync()
    srd(56, 10, 100663296)
    spin(F_KGO, 1)
    stamp(1)
    def scores():
        spin(F_QRDY, 1)
        stamp(4)
        a(f"""
        v_add_u32 v3, {L_Q}, v2
        ds_read_b128 v[56:59], v3
        ds_read_b128 v[60:63], v3 offset:128
        ds_read_b128 v[64:67], v3 offset:256
        v_mov_b32 v68, 0
        v_mov_b32 v69, 0
        v_mov_b32 v70, 0
        v_mov_b32 v71, 0
        s_waitcnt lgkmcnt(0)
        """)
        for ph in range(3):
            for d in range(4):
                for gi in range(4):
                    a(f"v_dot2_f32_bf16 v{68+gi}, v{KV+4*(3*gi+ph)+d}, v{56+4*ph+d}, v{68+gi}")
        for mode in ("quad_perm:[1,0,3,2]", "quad_perm:[2,3,0,1]", "row_half_mirror"):
            for gi in range(4):
                a(f"v_add_f32_dpp v{68+gi}, v{68+gi}, v{68+gi} {mode} row_mask:0xf bank_mask:0xf")
        bfround(vr(68, 4), 7)
        for gi in range(4): a(f"v_mul_f32 v{68+gi}, {fl(SCALE)}, v{68+gi}")
        bfround(vr(68, 4), 7)
        a(f"""
        s_mov_b32 s88, 0x02020202
        s_mov_b32 s89, 0x02020202
        s_mov_b32 s90, 0x04040404
        s_mov_b32 s91, 0x04040404
        s_mov_b32 s92, 0x08080808
        s_mov_b32 s93, 0x08080808
        v_cndmask_b32 v68, v68, v69, s[88:89]
        v_cndmask_b32 v68, v68, v70, s[90:91]
        v_cndmask_b32 v68, v68, v71, s[92:93]
        v_and_b32 v3, 7, v0
        v_lshlrev_b32 v3, 5, v3
        v_lshrrev_b32 v4, 3, v0
        v_lshlrev_b32 v4, 2, v4
        v_add_u32 v3, v3, v4
        s_lshl_b32 s6, s3, 7
        s_add_u32 s6, s6, {L_S}
        v_add_u32 v3, s6, v3
        s_mov_b32 exec_lo, 0x0f0f0f0f
        s_mov_b32 exec_hi, 0x0f0f0f0f
        ds_write_b32 v3, v68
        s_mov_b64 exec, -1
        s_waitcnt lgkmcnt(0)
        """)
        addflag(F_SCNT)
        stamp(5)
    WK = cfg.WK
    for idx in range(12):
        gi, ph = idx // 3, idx % 3
        if idx >= WK: a(f"s_waitcnt vmcnt({WK-1})")
        if ph == 0: a(f"s_add_u32 s86, s84, {3072*gi}")
        a(f"buffer_load_dwordx4 {rng(KV+4*idx,4)}, v1, s[56:59], s86 offen offset:{128*ph} {NT}")
    addflag(F_KISS)
    stamp(3)
    a("s_waitcnt vmcnt(0)")
    stamp(2)
    scores()
    a("s_branch L_PV")

    a.label("L_VLOAD")
    srd(56, 12, 100663296)
    srd(60, 16, 7864320)
    off384(48, 56, 384, 60)
    off128('v51', 'v52', 1280, 60)
    a(f"""
    s_mul_i32 s83, s82, 11
    s_and_b32 s6, s83, 1
    s_lshl_b32 s6, s6, 6
    v_xor_b32 v48, s6, v48
    v_xor_b32 v49, s6, v49
    v_xor_b32 v50, s6, v50
    v_xor_b32 v51, s6, v51
    s_mul_i32 s6, s83, 3072
    s_add_u32 s84, s6, s47
    s_add_u32 s85, s6, {L_V}
    s_cmp_eq_u32 s82, 2
    s_cselect_b32 s86, 10, 11
    s_mov_b32 s89, s86
    s_mul_i32 s80, s4, 768
    s_lshl_b32 s6, s42, 8
    s_add_u32 s80, s80, s6
    s_lshl_b32 s6, s83, 3
    s_add_u32 s80, s80, s6
    s_mul_i32 s80, s80, 1280
    s_lshl_b32 s6, s43, 7
    s_add_u32 s80, s80, s6
    s_lshl_b32 s81, s83, 10
    s_add_u32 s81, s81, {L_W}
    """)
    spin(F_KISS, cfg.vstart)
    stamp(5)
    def vgroup(Wn):
        for ph in range(3):
            a(f"""s_waitcnt vmcnt({Wn-1})
            s_mov_b32 m0, s85
            s_add_u32 s85, s85, 1024
            buffer_load_dwordx4 v{48+ph}, s[56:59], s84 offen {NT} lds""")
        a(f"""
        v_xor_b32 v48, 64, v48
        v_xor_b32 v49, 64, v49
        v_xor_b32 v50, 64, v50
        s_add_u32 s84, s84, 3072
        s_sub_u32 s86, s86, 1
        """)
    a.label("L_VL_V")
    if cfg.WVB: a(f"ds_read_b32 {VT}, {VF} offset:{F_QRDY}")
    vgroup(cfg.WVL)
    if cfg.WVB:
        a(f"""
        s_cmp_eq_u32 s86, 0
        s_cbranch_scc1 L_VL_VD
        s_waitcnt lgkmcnt(0)
        v_readfirstlane_b32 s97, {VT}
        s_cmp_eq_u32 s97, 0
        s_cbranch_scc1 L_VL_V
        L_VL_V2:
        """)
        vgroup(cfg.WVB)
        a(f"""
        s_cmp_lg_u32 s86, 0
        s_cbranch_scc1 L_VL_V2
        L_VL_VD:
        s_waitcnt lgkmcnt(0)
        """)
    else:
        a(f"""
        s_cmp_lg_u32 s86, 0
        s_cbranch_scc1 L_VL_V
        """)
    a(f"""
    s_mov_b32 s79, 0
    s_cmp_ge_u32 s5, 30
    s_cbranch_scc1 L_PV
    """)
    stamp(6)
    spin(F_QS, 3)
    a(f"""
    s_mov_b32 s79, s89
    L_VL_W:
    s_mov_b32 m0, s81
    s_add_u32 s81, s81, 1024
    buffer_load_dwordx4 v51, s[60:63], s80 offen {NT} lds
    v_xor_b32 v51, 64, v51
    s_add_u32 s80, s80, {8*1280}
    s_sub_u32 s89, s89, 1
    s_cmp_lg_u32 s89, 0
    s_cbranch_scc1 L_VL_W
    s_branch L_PV
    """)

    a.label("L_CHAIN")
    a(f"""s_mov_b32 s78, {R_CH}
    s_cmp_lt_u32 s5, 30
    s_cbranch_scc1 L_CH_ROLE
    s_mov_b32 s78, {R_CHX}
    L_CH_ROLE:""")
    a("s_setprio 3")
    a(f"""
    v_lshlrev_b32 v1, 2, v0
    v_mul_u32_u24 v2, 13, v0
    v_lshrrev_b32 v2, 8, v2
    v_mul_u32_u24 v3, 20, v2
    v_sub_u32 v3, v0, v3               ; c = lane%20
    v_cmp_gt_u32 vcc, 40, v0
    v_mov_b32 v7, {OOB:#x}
    s_mul_i32 s6, s46, 160
    v_mul_u32_u24 v4, 1280, v2
    v_lshlrev_b32 v5, 3, v3
    v_add3_u32 v5, v4, v5, s6
    v_cndmask_b32 v5, v7, v5, vcc
    s_lshr_b32 s6, s4, 1
    s_mul_i32 s6, s6, 320
    v_lshlrev_b32 v6, 4, v3
    v_add3_u32 v6, v4, v6, s6
    v_cndmask_b32 v6, v7, v6, vcc
    """)
    start_sync()
    srd(56, 8, 2560)
    srd(60, 26, 2560)
    a("buffer_load_dwordx4 v[20:23], v6, s[60:63], 0 offen")
    for b in range(2):
        for i in range(5):
            a(f"buffer_load_dword v{8+5*b+i}, v1, s[56:59], 0 offen offset:{1280*b+256*i}")
    a(f"""
    buffer_load_dwordx2 v[18:19], v5, s[56:59], 0 offen
    s_waitcnt vmcnt(11)
    """)
    stamp(1)
    for i in range(4): unpack(f"v{20+i}", f"v{24+2*i}", f"v{25+2*i}")
    for i in range(8): a(f"v_mul_f32 v{32+i}, {fl(-LOG2E)}, v{24+i}")
    for i in range(8): a(f"v_exp_f32 v{32+i}, v{32+i}")
    for i in range(8): a(f"v_add_f32 v{32+i}, 1.0, v{32+i}")
    for i in range(8): a(f"v_rcp_f32 v{40+i}, v{32+i}")
    for i in range(8): fdiv(f"v{48+i}", f"v{24+i}", f"v{40+i}", f"v{32+i}", "v56")
    for i in range(4): a(f"v_cvt_pk_bf16_f32 v{20+i}, v{48+2*i}, v{49+2*i}")
    a(f"""
    v_mul_u32_u24 v4, 320, v2
    v_lshlrev_b32 v7, 4, v3
    v_add_u32 v4, v4, v7
    v_add_u32 v4, {L_SC}, v4
    s_mov_b32 exec_hi, 0xff
    ds_write_b128 v4, v[20:23]
    s_mov_b32 exec_hi, -1
    s_waitcnt lgkmcnt(0)
    """)
    setflag(F_SCRDY)
    gettag()
    a("s_waitcnt vmcnt(0)")
    a("s_branch L_CH_LN")

    a.label("L_MSTAGE")
    tr_geom(100)
    a(f"""
    s_sub_u32 s72, s3, 10
    s_lshl_b32 s73, s72, 1
    v_xor_b32 v106, s73, v103
    v_lshlrev_b32 v106, 5, v106
    v_lshlrev_b32 v107, 7, v104
    v_add_u32 v107, v107, v105
    v_add_u32 v107, {L_MW}, v107
    v_xor_b32 v112, 32, v106
    v_add_u32 v112, v112, v107
    v_add_u32 v107, v106, v107
    v_and_b32 v108, 1, v0
    v_mul_u32_u24 v108, 320, v108
    v_lshlrev_b32 v109, 4, v100
    v_add_u32 v108, v108, v109
    v_add_u32 v108, {L_SC}, v108       ; A address
    ; store: 256*(g>>1) + 128u + 64*(g&1) + 4*(l&15)
    v_lshrrev_b32 v110, 1, v100
    v_lshlrev_b32 v110, 8, v110
    v_and_b32 v111, 1, v100
    v_lshlrev_b32 v111, 6, v111
    v_and_b32 v113, 15, v0
    v_lshlrev_b32 v113, 2, v113
    v_add3_u32 v110, v110, v111, v113
    s_lshl_b32 s6, s72, 7
    v_add_u32 v110, s6, v110
    """)
    spin(F_SCRDY, 1)
    for t in range(5): a(f"ds_read_b128 {rng(48+4*t,4)}, v108 offset:{64*t}")
    spin(F_MLAND, 1)
    for t in range(5):
        for hh in range(2):
            a(f"ds_read_b64_tr_b16 {rng(68+4*t+2*hh,2)}, v107 offset:{4096*t+512*hh}")
    for t in range(5):
        a(f"s_waitcnt lgkmcnt({2*(4-t) + 2*t})")
        c = '0' if t == 0 else 'v[96:99]'
        a(f"v_mfma_f32_16x16x32_bf16 v[96:99], {rng(48+4*t,4)}, {rng(68+4*t,4)}, {c}")
        for hh in range(2):
            a(f"ds_read_b64_tr_b16 {rng(120+4*t+2*hh,2)}, v112 offset:{4096*t+512*hh}")
    for t in range(5):
        a(f"s_waitcnt lgkmcnt({2*(4-t)})")
        c = '0' if t == 0 else 'v[140:143]'
        a(f"v_mfma_f32_16x16x32_bf16 v[140:143], {rng(48+4*t,4)}, {rng(120+4*t,4)}, {c}")
    a(f"""
    v_cndmask_b32 v96, v96, v140, s[48:49]
    v_cndmask_b32 v96, v96, v97, s[50:51]
    v_cndmask_b32 v96, v96, v141, s[52:53]
    """)
    tagit(['v96'])
    a(f"""
    buffer_store_dword v96, v110, s[36:39], s44 offen offset:{O_MP} sc1
    s_branch L_POST_M
    L_CH_LN:
    """)
    stamp(3)
    for b in range(2):
        for i in range(5): unpack(f"v{8+5*b+i}", f"v{24+10*b+2*i}", f"v{25+10*b+2*i}")
    for b in range(2):
        a(f"v_add_f32 v{44+b}, v{24+10*b}, v{25+10*b}")
        for i in range(2, 10): a(f"v_add_f32 v{44+b}, v{44+b}, v{24+10*b+i}")
    row16_sum(['v44', 'v45']); xrow16_sum(['v44', 'v45'], 50)
    for b in range(2): a(f"v_mul_f32 v{44+b}, {fl(1/640)}, v{44+b}")
    for b in range(2):
        for i in range(10): a(f"v_sub_f32 v{24+10*b+i}, v{24+10*b+i}, v{44+b}")
        a(f"v_mul_f32 v{46+b}, v{24+10*b}, v{24+10*b}")
        for i in range(1, 10): a(f"v_fma_f32 v{46+b}, v{24+10*b+i}, v{24+10*b+i}, v{46+b}")
    row16_sum(['v46', 'v47']); xrow16_sum(['v46', 'v47'], 50)
    for b in range(2): a(f"v_mul_f32 v{46+b}, {fl(1/640)}, v{46+b}")
    ln_finish('v44', 'v46', 50); ln_finish('v45', 'v47', 50)
    a(f"""
    v_cmp_eq_u32 vcc, 1, v2
    v_cndmask_b32 v44, v44, v45, vcc
    v_cndmask_b32 v46, v46, v47, vcc
    v_rcp_f32 v47, v46
    """)
    unpack('v18', 'v24', 'v25'); unpack('v19', 'v26', 'v27')
    for i in range(4): a(f"v_sub_f32 v{24+i}, v{24+i}, v44")
    bfround(vr(24, 4), 50)
    for i in range(4): fdiv(f"v{28+i}", f"v{24+i}", "v47", "v46", "v50")
    bfround(vr(28, 4), 50)
    a(f"""
    s_mov_b32 s68, -1
    s_mov_b32 s69, 0xff               ; lanes < 40
    s_mov_b32 s70, -1
    s_mov_b32 s71, 0xffff             ; lanes < 48
    s_mul_i32 s6, s46, 80
    v_lshlrev_b32 v4, 2, v3
    v_add_u32 v4, s6, v4               ; col
    v_lshlrev_b32 v5, 8, v2            ; 256*b
    v_mov_b32 v7, {OOB:#x}
    v_cmp_gt_u32 vcc, 40, v0
    """)
    for wh in range(2):
        a(f"""
        v_add_u32 v6, {640*wh}, v4
        v_lshrrev_b32 v15, 6, v6
        v_lshlrev_b32 v15, 16, v15
        v_and_b32 v6, 63, v6
        v_lshlrev_b32 v6, 2, v6
        v_add3_u32 v6, v6, v15, v5
        v_cndmask_b32 v{20+wh}, v7, v6, vcc
        """)
    a(f"""
    s_mov_b32 s84, 0
    s_mov_b32 s85, {2*REGION}
    s_mov_b32 s86, {4*REGION}
    s_mov_b32 s87, {6*REGION}
    """)
    tr_geom(100)
    QA = [156, 157, 158, 159]; QT = [96, 97, 98, 99]
    a(f"""
    v_mul_u32_u24 v106, 384, v104
    v_add_u32 v106, v106, v105
    v_add_u32 v106, {L_W}, v106
    v_lshlrev_b32 v107, 2, v100
    v_add_u32 v107, v107, v101
    v_mul_u32_u24 v107, 384, v107
    v_add_u32 v107, v107, v105
    v_add_u32 v107, {L_W + 64*384}, v107
    v_lshrrev_b32 v108, 1, v101
    v_and_b32 v109, 2, v100
    v_or_b32 v108, v108, v109          ; sigma'
    v_and_b32 v6, 1, v0
    v_mul_u32_u24 v6, 160, v6
    v_add_u32 v6, {L_H}, v6
    v_lshlrev_b32 v94, 4, v100
    v_add_u32 v94, v94, v6
    v_lshlrev_b32 v95, 3, v100
    v_add_u32 v95, v95, v6
    """)
    for q in range(4):
        a(f"""v_xor_b32 v{QA[q]}, {q}, v103
        v_lshlrev_b32 v{QA[q]}, 5, v{QA[q]}
        v_add_u32 v{QA[q]}, v{QA[q]}, v106
        v_xor_b32 v{QT[q]}, {q}, v108
        v_lshlrev_b32 v{QT[q]}, 5, v{QT[q]}
        v_add_u32 v{QT[q]}, v{QT[q]}, v107""")
    QB = [64, 74, 84, 116, 126, 136, 146]
    def qreads(n):
        G, q = n // 4, n % 4
        base = QB[n % 7]
        for t in range(2):
            for hh in range(2):
                a(f"ds_read_b64_tr_b16 {rng(base+4*t+2*hh,2)}, v{QA[q]} offset:{128*G + (32*t+4*hh)*384}")
        a(f"ds_read_b64_tr_b16 {rng(base+8,2)}, v{QT[q]} offset:{128*G}")
    spin(F_WQLAND, 1)
    stamp(4)
    for n in range(7):
        qreads(n)
        if n % 2 == 1: a("s_waitcnt lgkmcnt(5)")
    def mp_loads(base):
        for wh in range(2):
            for ks in range(4):
                a(f"buffer_load_dwordx4 {rng(base+16*wh+4*ks,4)}, v{20+wh}, s[36:39], s{84+ks} offen offset:{O_MP} sc1")
    def mp_consume(base):
        for wh in range(2):
            B = base + 16*wh; D = 100 + 8*wh
            for h in range(2):
                pkadd(D+2*h, B+2*h, B+4+2*h); pkadd(D+4+2*h, B+8+2*h, B+12+2*h)
            for h in range(2): pkadd(D+2*h, D+2*h, D+4+2*h)
    assert not cfg.pipe
    if cfg.dm: a(f"s_sleep {cfg.dm}")
    CP = [64, 66, 72, 76, 80, 82, 92, 98]
    if cfg.sel:
        poll_sel([(f"buffer_load_dwordx4 {rng(32+16*wh+4*ks,4)}, v{20+wh}, s[36:39], s{84+ks} offen offset:{O_MP} sc1", f"v{32+16*wh+4*ks+3}", 's[68:69]')
                  for wh in range(2) for ks in range(4)], itstamp=30, pairs=[64, 66, 72, 76, 80, 82, 90, 92])
        mp_consume(32)
    else:
        poll2(mp_loads, 8, 32, 64, lambda b: pick(vr(b, 32), 4), mp_consume, itstamp=30, space=cfg.sp_m, mask='s[68:69]')
    stamp(5)
    bfround(vr(100, 4), 22); bfround(vr(108, 4), 22)
    for i in range(4): a(f"v_add_f32 v{108+i}, 1.0, v{108+i}")
    bfround(vr(108, 4), 22)
    for i in range(4): a(f"v_mul_f32 v{28+i}, v{28+i}, v{108+i}")
    bfround(vr(28, 4), 22)
    for i in range(4): a(f"v_add_f32 v{28+i}, v{28+i}, v{100+i}")
    a(f"""
    v_cvt_pk_bf16_f32 v24, v28, v29
    v_cvt_pk_bf16_f32 v25, v30, v31
    v_mul_u32_u24 v4, 160, v2
    v_lshlrev_b32 v5, 3, v3
    v_add_u32 v4, v4, v5
    v_add_u32 v4, {L_H}, v4
    s_mov_b32 exec_hi, 0xff
    ds_write_b64 v4, v[24:25]
    s_mov_b32 exec_hi, -1
    s_waitcnt lgkmcnt(0)
    """)
    stamp(6)
    a("""s_waitcnt lgkmcnt(0)
    ds_read_b128 v[8:11], v94
    ds_read_b128 v[12:15], v94 offset:64
    ds_read_b64 v[16:17], v95 offset:128""")
    spin(F_FAST, 1)
    a("s_mov_b32 s75, s97")
    for n in range(12):
        G, q = n // 4, n % 4
        base = QB[n % 7]
        if n >= 7: a(f"s_waitcnt lgkmcnt({min(10, 5*(11 - n))})")
        a(f"v_mfma_f32_16x16x32_bf16 {rng(32+4*q,4)}, v[8:11], {rng(base,4)}, 0")
        a(f"v_mfma_f32_16x16x16_bf16 {rng(48+4*q,4)}, v[16:17], {rng(base+8,2)}, 0")
        a(f"v_mfma_f32_16x16x32_bf16 {rng(32+4*q,4)}, v[12:15], {rng(base+4,4)}, {rng(32+4*q,4)}")
        if n + 7 < 12:
            if n >= 2: a("s_waitcnt lgkmcnt(10)")
            qreads(n + 7)
        if q == 3:
            for b in range(2):
                a(f"""v_cndmask_b32 v{18+b}, v{32+b}, v{36+b}, s[48:49]
                v_cndmask_b32 v{24+b}, v{48+b}, v{52+b}, s[48:49]
                v_cndmask_b32 v{18+b}, v{18+b}, v{40+b}, s[50:51]
                v_cndmask_b32 v{24+b}, v{24+b}, v{56+b}, s[50:51]
                v_cndmask_b32 v{18+b}, v{18+b}, v{44+b}, s[52:53]
                v_cndmask_b32 v{24+b}, v{24+b}, v{60+b}, s[52:53]
                v_add_f32 v{18+b}, v{18+b}, v{24+b}""")
            tagit(['v18', 'v19'])
            F = a.new('QF'); D = a.new('QD')
            if cfg.fast:
                a(f"""
                s_cmp_eq_u32 s75, 2
                s_cbranch_scc1 {F}
                buffer_store_dword v18, v1, s[36:39], s44 offen offset:{O_QP+256*G} sc1
                buffer_store_dword v19, v1, s[36:39], s44 offen offset:{O_QP+768+256*G} sc1
                s_branch {D}
                {F}:
                buffer_store_dword v18, v1, s[36:39], s44 offen offset:{O_QP+256*G}
                buffer_store_dword v19, v1, s[36:39], s44 offen offset:{O_QP+768+256*G}
                {D}:
                """)
            else:
                a(f"""
                buffer_store_dword v18, v1, s[36:39], s44 offen offset:{O_QP+256*G} sc1
                buffer_store_dword v19, v1, s[36:39], s44 offen offset:{O_QP+768+256*G} sc1
                """)
    setflag(F_QS, 3)
    stamp(7)
    a(f"""
    s_lshl_b32 s6, s40, 6
    s_add_u32 s6, s6, s4
    s_lshl_b32 s84, s6, 13
    s_mul_i32 s6, s45, 768
    s_add_u32 s84, s84, s6
    v_lshlrev_b32 v4, 4, v0
    v_mov_b32 v7, {OOB:#x}
    v_cmp_gt_u32 vcc, 48, v0
    v_cndmask_b32 v4, v7, v4, vcc
    """)
    for i in range(1, 8): a(f"s_add_u32 s{84+i}, s{84+i-1}, {8*REGION}")
    def qp_loads(base):
        for i in range(8):
            a(f"buffer_load_dwordx4 {rng(base+4*i,4)}, v4, s[36:39], s{84+i} offen offset:{O_QP} sc1")
    def qp_consume(base):
        for h in range(2):
            for i in range(4): pkadd(8+4*i+2*h, base+8*i+2*h, base+8*i+4+2*h)
        for h in range(2):
            pkadd(8+2*h, 8+2*h, 12+2*h); pkadd(16+2*h, 16+2*h, 20+2*h)
        for h in range(2): pkadd(32 - 24 + 2*h, 8+2*h, 16+2*h)
    if cfg.dq: a(f"s_sleep {cfg.dq}")
    if cfg.sel:
        poll_sel([(f"buffer_load_dwordx4 {rng(96+4*i,4)}, v4, s[36:39], s{84+i} offen offset:{O_QP} sc1", f"v{96+4*i+3}", 's[70:71]') for i in range(8)],
                 itstamp=31, pairs=[56, 58, 60, 62, 64, 66, 72, 76])
        qp_consume(96)
    else:
        poll2(qp_loads, 8, 96, 128, lambda b: pick(vr(b, 32), 4), qp_consume, itstamp=31, space=cfg.sp_q, mask='s[70:71]')
    stamp(9)
    a(f"""
    v_cvt_pk_bf16_f32 v24, v8, v9
    v_cvt_pk_bf16_f32 v25, v10, v11
    v_lshlrev_b32 v4, 3, v0
    v_add_u32 v4, {L_Q}, v4
    s_mov_b32 exec_hi, 0xffff
    ds_write_b64 v4, v[24:25]
    s_mov_b32 exec_hi, -1
    s_waitcnt lgkmcnt(0)
    """)
    setflag(F_QRDY)
    spin(F_SCNT, 8)
    stamp(10)
    a(f"""
    v_lshlrev_b32 v4, 4, v0
    v_add_u32 v4, {L_S}, v4
    ds_read_b128 v[32:35], v4
    s_waitcnt lgkmcnt(0)
    v_max3_f32 v36, v32, v33, v34
    v_max_f32 v36, v36, v35
    """)
    row16_sum(['v36'], 'v_max_f32'); xrow16_sum(['v36'], 50, 'v_max_f32')
    a(f"v_mul_f32 v36, {fl(LOG2E)}, v36")
    tagit(['v36'])
    a(f"s_mov_b32 s6, {fl(LOG2E)}")
    for i in range(4): a(f"v_fma_f32 v{32+i}, v{32+i}, s6, -v36")
    for i in range(4): a(f"v_exp_f32 v{32+i}, v{32+i}")
    a(f"""
    v_add_f32 v37, v32, v33
    v_add_f32 v38, v34, v35
    v_cvt_pk_bf16_f32 v24, v32, v33
    v_cvt_pk_bf16_f32 v25, v34, v35
    v_add_f32 v37, v37, v38
    v_lshlrev_b32 v4, 3, v0
    v_add_u32 v4, {L_P}, v4
    ds_write_b64 v4, v[24:25]
    """)
    spin(F_FAST, 1)
    a("s_mov_b32 s75, s97")
    setflag(F_PRDY)
    row16_sum(['v37']); xrow16_sum(['v37'], 50)
    tagit(['v37'])
    a(f"""
    v_mov_b32 v7, {OOB:#x}
    v_cmp_eq_u32 vcc, 0, v0
    v_cndmask_b32 v4, v7, 0, vcc
    """)
    a("s_waitcnt vmcnt(0)")
    pub_local(f"buffer_store_dwordx2 v[36:37], v4, s[36:39], s44 offen offset:{O_ML}")
    stamp(11)
    a("s_branch L_PV")

    a.label("L_POST")
    a("s_setprio 3")
    a("s_sub_u32 s54, s3, 10")
    start_sync()
    a(f"""
    s_cmp_eq_u32 s54, 0
    s_cbranch_scc0 L_POST_W11
    s_mov_b32 s78, {R_P0}
    s_cmp_lt_u32 s5, 30
    s_cbranch_scc1 L_POST_R0
    s_mov_b32 s78, {R_P0X}
    L_POST_R0:
    v_mov_b32 v2, {EPOCH_OFF}
    buffer_load_dword v47, v2, s[36:39], 0 offen sc1
    s_getreg_b32 s76, hwreg(HW_REG_XCC_ID)
    s_and_b32 s76, s76, 15
    s_waitcnt vmcnt(0)
    v_add_u32 v47, 1, v47
    v_and_b32 v3, 0xff, v47
    v_or_b32 v4, 0x100, v3
    ds_write_b32 {VF}, v47 offset:{F_EPOCH}
    ds_write_b32 {VF}, v4 offset:{F_TAG}
    s_lshl_b32 s6, s76, 8
    v_or_b32 v3, s6, v3                ; (xcc<<8)|tag
    v_mov_b32 v4, {OOB:#x}
    v_cmp_eq_u32 vcc, 0, v0
    v_cndmask_b32 v4, v4, 0, vcc
    buffer_store_dword v3, v4, s[36:39], s44 offen offset:{O_XC} sc1
    s_branch L_POST_A
    L_POST_W11:
    s_mov_b32 s78, {R_P1}
    s_cmp_lt_u32 s5, 30
    s_cbranch_scc1 L_POST_R1
    s_mov_b32 s78, {R_P1X}
    L_POST_R1:
    """)
    if not cfg.pf_top:
        a(f"""
        s_mov_b32 s58, L_CODE_END-{KNAME}
        s_mov_b32 s59, 0x00020000
        s_lshl_b32 s6, s5, 10
        v_lshlrev_b32 v2, 4, v0
        buffer_load_dwordx4 v[152:155], v2, s[56:59], s6 offen
        """)
    srd(56, 16, 7864320); srd(60, 20, 1966080); srd(64, 22, 1966080); srd(68, 24, 1966080)
    a(f"""
    s_mul_i32 s6, s4, 768
    s_lshl_b32 s7, s42, 8
    s_add_u32 s6, s6, s7
    s_mul_i32 s6, s6, 1280
    v_lshlrev_b32 v3, 16, v0
    v_mov_b32 v4, {OOB:#x}
    v_cmp_gt_u32 vcc, 5, v0
    v_cndmask_b32 v3, v4, v3, vcc
    buffer_load_dword v156, v3, s[56:59], s6 offen
    s_mul_i32 s6, s43, {64*3072}
    buffer_load_dword v157, v3, s[60:63], s6 offen
    buffer_load_dword v158, v3, s[64:67], s6 offen
    s_mul_i32 s7, s4, 3
    s_add_u32 s7, s7, s42
    s_mul_i32 s6, s7, {64*1280}
    buffer_load_dword v159, v3, s[68:71], s6 offen
    L_POST_A:
    """)
    stamp(1)
    gettag()
    a(f"""
    s_cmp_eq_u32 s78, {R_P0X}
    s_cbranch_scc1 L_POST_XC
    s_cmp_eq_u32 s78, {R_P1X}
    s_cbranch_scc1 L_POST_Q
    """)
    a("s_branch L_MSTAGE")
    a.label("L_POST_M")
    a(f"""
    s_cmp_eq_u32 s78, {R_P0}
    s_cbranch_scc0 L_POST_ADDR
    L_POST_XC:
    """)
    a(f"""
    v_lshlrev_b32 v48, 16, v0
    s_lshl_b32 s6, s4, 13
    v_add_u32 v48, s6, v48
    v_mov_b32 v49, {OOB:#x}
    v_cmp_gt_u32 vcc, 32, v0
    v_cndmask_b32 v48, v49, v48, vcc
    s_mov_b32 s76, -1
    s_mov_b32 s77, 0
    """)
    def xc_loads():
        a(f"buffer_load_dword v50, v48, s[36:39], 0 offen offset:{O_XC} sc1")
    poll(xc_loads, ['v50'], mask='s[76:77]')
    a(f"""
    s_getreg_b32 s6, hwreg(HW_REG_XCC_ID)
    s_and_b32 s6, s6, 15
    v_lshrrev_b32 v50, 8, v50
    v_cmp_ne_u32 vcc, s6, v50
    s_and_b64 vcc, vcc, s[76:77]
    s_cselect_b32 s6, 1, 2
    v_mov_b32 {VT}, s6
    ds_write_b32 {VF}, {VT} offset:{F_FAST}
    """)
    stamp(4)
    a(f"""
    s_cmp_eq_u32 s78, {R_P0X}
    s_cbranch_scc1 L_POST_Q
    L_POST_ADDR:
    """)
    a(f"""
    v_lshrrev_b32 v1, 4, v0            ; g
    v_and_b32 v2, 15, v0               ; c
    v_lshlrev_b32 v3, 4, v2            ; 16c
    s_lshl_b32 s55, s54, 8             ; 256*b
    v_lshl_add_u32 v4, v2, 2, v1       ; column 4c+g
    v_lshlrev_b32 v4, 1, v4
    s_lshl_b32 s6, s54, 7
    v_add_u32 v9, s6, v4
    v_lshlrev_b32 v10, 1, v0
    v_add_u32 v10, s6, v10
    v_add_u32 v10, {L_H2}, v10
    s_add_u32 s6, s54, 30
    s_lshl_b32 s6, s6, 3
    s_add_u32 s6, s6, s4
    s_lshl_b32 s6, s6, 13
    s_lshl_b32 s7, s43, 8
    s_add_u32 s6, s6, s7
    v_lshlrev_b32 v22, 2, v0
    v_add_u32 v22, s6, v22
    s_mul_i32 s6, s42, 80
    s_add_u32 s6, s6, s4
    s_lshl_b32 s6, s6, 13
    s_add_u32 s7, s6, s55
    v_mov_b32 v7, {OOB:#x}
    """)
    for i in range(3):
        a(f"""
        v_add_u32 v5, {4*i}, v1
        v_cmp_gt_u32 vcc, 10, v5
        v_lshlrev_b32 v5, 16, v5
        v_add3_u32 v5, v5, v3, s7
        v_cndmask_b32 v{23+i}, v7, v5, vcc
        """)
    a(f"""
    s_lshl_b32 s6, s42, 8
    v_lshlrev_b32 v5, 2, v0
    v_add_u32 v5, s6, v5               ; rho
    v_mul_u32_u24 v6, 342, v5
    v_lshrrev_b32 v6, 16, v6           ; rho/192
    v_mul_u32_u24 v7, 192, v6
    v_sub_u32 v5, v5, v7
    v_lshlrev_b32 v5, 2, v5
    v_lshlrev_b32 v6, 3, v6
    s_lshl_b32 s6, s54, 2
    v_add_u32 v6, s6, v6
    v_lshlrev_b32 v6, 3, v6
    v_add_u32 v6, s4, v6
    v_lshlrev_b32 v26, 13, v6
    v_add_u32 v27, v26, v5             ; O address
    v_lshlrev_b32 v28, 3, v0
    s_lshl_b32 s6, s54, 9
    s_add_u32 s6, s6, {L_AO}
    v_add_u32 v28, s6, v28
    s_mov_b32 s88, {O_GP}
    s_mov_b32 s90, -1
    s_mov_b32 s91, 0
    L_POST_Q:
    s_add_u32 s82, s54, 1
    s_branch L_VLOAD
    """)

    a.label("L_PV")
    tr_geom(100)
    a(f"""
    s_and_b32 s6, s3, 3
    v_xor_b32 v106, s6, v103
    v_lshlrev_b32 v106, 5, v106
    s_lshr_b32 s6, s3, 2
    s_lshl_b32 s6, s6, 7
    v_mul_u32_u24 v107, 384, v104
    v_add3_u32 v107, v107, v105, v106
    v_add_u32 v107, s6, v107
    v_add_u32 v108, 49152, v107
    v_lshlrev_b32 v109, 4, v100
    v_add_u32 v109, {L_P}, v109
    s_lshl_b32 s6, s3, 6
    v_lshlrev_b32 v110, 2, v0
    v_add_u32 v110, s6, v110
    v_mov_b32 v111, {OOB:#x}
    v_cmp_gt_u32 vcc, 16, v0
    v_cndmask_b32 v110, v111, v110, vcc
    """)
    if cfg.prea:
        spin(F_PRDY, 1)
        a(f"ds_read_b64 v[164:165], {VF} offset:{F_TAG}")
        for t in range(8): a(f"ds_read_b128 {rng(64+4*t,4)}, v109 offset:{64*t}")
    a(f"""
    s_cmp_eq_u32 s79, 11
    s_cbranch_scc0 L_PV_WA
    s_waitcnt vmcnt(11)
    s_branch L_PV_W1
    L_PV_WA:
    s_cmp_eq_u32 s79, 10
    s_cbranch_scc0 L_PV_W0
    s_waitcnt vmcnt(10)
    s_branch L_PV_W1
    L_PV_W0:
    s_cmp_eq_u32 s79, 0
    s_cbranch_scc0 L_PV_W1
    s_waitcnt vmcnt(0)
    L_PV_W1:
    s_waitcnt lgkmcnt(0)
    """)
    stamp(8)
    if cfg.prea:
        a(f"""v_readfirstlane_b32 s97, v164
        v_readfirstlane_b32 s75, v165
        v_and_b32 {VTAG}, 0xff, v164
        v_mov_b32 {VM8}, 0xff
        s_and_b32 s95, s97, 0xff""")
    a("s_barrier")
    stamp(12)
    bufs = [48, 52, 56, 60]
    if cfg.prea:
        vb = [48, 52, 56, 60, 112, 116, 120]
        def vread(t):
            ad = 'v107' if t < 4 else 'v108'
            tt = t % 4
            base = vb[t % 7]
            a(f"ds_read_b64_tr_b16 {rng(base,2)}, {ad} offset:{12288*tt}")
            a(f"ds_read_b64_tr_b16 {rng(base+2,2)}, {ad} offset:{12288*tt+1536}")
        for t in range(7): vread(t)
        for t in range(8):
            rem = min(7, t + 6) - t
            a(f"s_waitcnt lgkmcnt({2*rem})")
            c = '0' if t == 0 else 'v[96:99]'
            a(f"v_mfma_f32_16x16x32_bf16 v[96:99], {rng(64+4*t,4)}, {rng(vb[t%7],4)}, {c}")
            if t + 7 < 8: vread(t + 7)
    else:
        a(f"ds_read_b64 v[164:165], {VF} offset:{F_TAG}")
        def vread(t):
            ad = 'v107' if t < 4 else 'v108'
            tt = t % 4
            base = bufs[t % 4]
            a(f"ds_read_b128 {rng(64+4*t,4)}, v109 offset:{64*t}")
            a(f"ds_read_b64_tr_b16 {rng(base,2)}, {ad} offset:{12288*tt}")
            a(f"ds_read_b64_tr_b16 {rng(base+2,2)}, {ad} offset:{12288*tt+1536}")
        for t in range(4): vread(t)
        for t in range(8):
            rem = min(7, t + 3) - t
            a(f"s_waitcnt lgkmcnt({3*rem})")
            c = '0' if t == 0 else 'v[96:99]'
            a(f"v_mfma_f32_16x16x32_bf16 v[96:99], {rng(64+4*t,4)}, {rng(bufs[t%4],4)}, {c}")
            if t + 4 < 8: vread(t + 4)
            if t == 1:
                a(f"""v_readfirstlane_b32 s97, v164
                v_readfirstlane_b32 s75, v165
                v_and_b32 {VTAG}, 0xff, v164
                v_mov_b32 {VM8}, 0xff
                s_and_b32 s95, s97, 0xff""")
    tagit(['v96'])
    pub_local(f"buffer_store_dword v96, v110, s[36:39], s44 offen offset:{O_OP}")
    stamp(13)
    a(f"""
    s_cmp_eq_u32 s78, {R_K}
    s_cbranch_scc1 L_K2
    s_cmp_eq_u32 s78, {R_P0}
    s_cbranch_scc1 L_POST2
    s_cmp_eq_u32 s78, {R_P1}
    s_cbranch_scc1 L_POST2
    s_cmp_eq_u32 s78, {R_KX}
    s_cbranch_scc1 L_HUB
    s_cmp_eq_u32 s78, {R_LDX}
    s_cbranch_scc1 L_HUB
    s_cmp_eq_u32 s78, {R_CHX}
    s_cbranch_scc1 L_HUB
    s_cmp_eq_u32 s78, {R_LD}
    s_cbranch_scc0 L_FIN
    s_waitcnt vmcnt(1)
    s_barrier
    s_branch L_FIN
    """)
    a.label("L_K2")
    a(f"""
    s_mul_i32 s88, s4, 3
    s_add_u32 s88, s88, s42            ; f
    s_movk_i32 s89, 0xc00
    s_cmp_eq_u32 s3, 6
    s_cselect_b32 s89, 1280, s89
    s_cselect_b32 s90, s88, s43
    s_cselect_b32 s91, s43, s88
    s_lshl_b32 s90, s90, 6
    s_mul_i32 s90, s90, s89
    s_lshl_b32 s91, s91, 7
    s_add_u32 s90, s90, s91            ; soffset
    s_cmp_eq_u32 s3, 4
    s_cselect_b32 s68, s20, s22
    s_cselect_b32 s69, s21, s23
    s_cmp_eq_u32 s3, 6
    s_cselect_b32 s68, s24, s68
    s_cselect_b32 s69, s25, s69
    s_mov_b32 s70, 1966080
    s_mov_b32 s71, 0x00020000
    s_sub_u32 s91, s3, 4
    s_lshl_b32 s91, s91, 13
    s_add_u32 s91, s91, {L_MW}
    """)
    off128('v72', 'v73', 's89', 1)
    a(f"""
    s_lshl_b32 s89, s89, 3             ; 8 rows
    s_and_b32 s6, s3, 1
    s_lshl_b32 s7, s6, 1
    v_xor_b32 v106, s7, v103
    v_lshlrev_b32 v106, 5, v106
    v_lshlrev_b32 v107, 7, v104
    v_add_u32 v107, v107, v105             ; (8g+r)*128 + 8c
    v_xor_b32 v105, 32, v106
    v_add_u32 v105, v105, v107
    v_add_u32 v106, v106, v107
    s_and_b32 s7, s3, 3
    v_xor_b32 v109, s7, v103
    v_lshlrev_b32 v109, 5, v109
    v_add_u32 v107, v109, v107
    v_and_b32 v108, 1, v0
    v_lshrrev_b32 v110, 1, v100
    v_lshlrev_b32 v110, 8, v110
    v_and_b32 v111, 1, v100
    v_lshlrev_b32 v111, 6, v111
    v_and_b32 v113, 15, v0
    v_lshlrev_b32 v113, 2, v113
    v_add3_u32 v110, v110, v111, v113
    s_lshl_b32 s6, s6, 7
    v_add_u32 v110, s6, v110
    s_lshl_b32 s7, s7, 6
    s_lshr_b32 s6, s3, 2
    s_lshl_b32 s6, s6, 9
    s_add_u32 s7, s7, s6
    v_lshlrev_b32 v111, 8, v100
    v_add3_u32 v115, v111, v113, s7
    v_mov_b32 v111, {OOB:#x}
    v_cmp_gt_u32 vcc, 32, v0
    v_cndmask_b32 v115, v111, v115, vcc
    v_lshlrev_b32 v113, 4, v100            ; 16g
    v_lshlrev_b32 v112, 9, v108
    v_add_u32 v112, v112, v113
    v_add_u32 v112, {L_AO}, v112
    v_add_u32 v114, {L_W}, v106
    v_add_u32 v116, {L_W}, v105
    s_waitcnt vmcnt(1)
    s_barrier
    """)
    stamp(14)
    a(f"""
    s_cmp_gt_u32 s3, 1
    s_cbranch_scc1 L_K_NOWO
    """)
    def wread(t, base, ad):
        a(f"ds_read_b64_tr_b16 {rng(base,2)}, {ad} offset:{4096*t}")
        a(f"ds_read_b64_tr_b16 {rng(base+2,2)}, {ad} offset:{4096*t+512}")
    bA = [48, 52, 56]; bB = [120, 124, 128]
    def woread(t):
        a(f"ds_read_b128 {rng(64+4*t,4)}, v112 offset:{64*t}")
        wread(t, bA[t % 3], 'v114'); wread(t, bB[t % 3], 'v116')
    for t in range(3): woread(t)
    for t in range(8):
        rem = min(7, t + 2) - t
        a(f"s_waitcnt lgkmcnt({5*rem})")
        c0 = '0' if t == 0 else 'v[96:99]'; c1 = '0' if t == 0 else 'v[140:143]'
        a(f"v_mfma_f32_16x16x32_bf16 v[96:99], {rng(64+4*t,4)}, {rng(bA[t%3],4)}, {c0}")
        a(f"v_mfma_f32_16x16x32_bf16 v[140:143], {rng(64+4*t,4)}, {rng(bB[t%3],4)}, {c1}")
        if t + 3 < 8: woread(t + 3)
    a(f"""
    v_cndmask_b32 v96, v96, v140, s[48:49]
    v_cndmask_b32 v96, v96, v97, s[50:51]
    v_cndmask_b32 v96, v96, v141, s[52:53]
    v_bfi_b32 v96, {VM8}, {VTAG}, v96
    buffer_store_dword v96, v110, s[36:39], s44 offen offset:{O_P1} sc1
    """)
    if cfg.ffn_ack:
        a("s_waitcnt vmcnt(0)")
        addflag(F_P1ACK)
    a(f"""
    s_branch L_K_GU
    L_K_NOWO:
    s_cmp_lt_u32 s3, 4
    s_cbranch_scc1 L_K_GU
    s_cmp_eq_u32 s3, 7
    s_cbranch_scc1 L_K_GU
    """)
    if cfg.ffn_ack: spin(F_P1ACK, 2)
    for i in range(8):
        a(f"""s_add_u32 m0, s91, {1024*i}
        s_nop 0
        buffer_load_dwordx4 v{72 + (i & 1)}, s[68:71], s90 offen {NT} lds""")
        if i < 7: a("s_add_u32 s90, s90, s89")
    a("s_waitcnt vmcnt(0)")
    a.label("L_K_GU")
    stamp(15)
    a(f"""
    s_lshr_b32 s6, s3, 2
    s_lshl_b32 s7, s6, 13
    s_add_u32 s7, s7, {L_MW}
    v_add_u32 v114, s7, v107
    v_lshlrev_b32 v112, 7, v108
    v_add_u32 v112, v112, v113
    v_add_u32 v117, {L_ACT}, v112
    v_add_u32 v112, {L_H2}, v112
    s_add_u32 s6, s44, {O_GP}
    s_barrier
    """)
    stamp(16)
    a(f"""
    ds_read_b128 v[64:67], v112
    ds_read_b128 v[68:71], v112 offset:64
    """)
    wread(0, 48, 'v114'); wread(1, 52, 'v114')
    a(f"""
    s_waitcnt lgkmcnt(2)
    v_mfma_f32_16x16x32_bf16 v[96:99], v[64:67], v[48:51], 0
    s_waitcnt lgkmcnt(0)
    v_mfma_f32_16x16x32_bf16 v[96:99], v[68:71], v[52:55], v[96:99]
    v_cndmask_b32 v96, v96, v97, s[48:49]
    v_bfi_b32 v96, {VM8}, {VTAG}, v96
    """)
    pub_local("buffer_store_dword v96, v115, s[36:39], s6 offen")
    stamp(17)
    a(f"""
    s_cmp_gt_u32 s3, 1
    s_cbranch_scc1 L_FIN
    v_add_u32 v114, {L_MW + 16384}, v106
    v_add_u32 v116, {L_MW + 16384}, v105
    """)
    wread(0, 48, 'v114'); wread(1, 52, 'v114'); wread(0, 120, 'v116'); wread(1, 124, 'v116')
    a("s_barrier")
    stamp(18)
    a(f"""
    ds_read_b128 v[64:67], v117
    ds_read_b128 v[68:71], v117 offset:64
    s_waitcnt lgkmcnt(1)
    v_mfma_f32_16x16x32_bf16 v[96:99], v[64:67], v[48:51], 0
    v_mfma_f32_16x16x32_bf16 v[140:143], v[64:67], v[120:123], 0
    s_waitcnt lgkmcnt(0)
    v_mfma_f32_16x16x32_bf16 v[96:99], v[68:71], v[52:55], v[96:99]
    v_mfma_f32_16x16x32_bf16 v[140:143], v[68:71], v[124:127], v[140:143]
    v_cndmask_b32 v96, v96, v140, s[48:49]
    v_cndmask_b32 v96, v96, v97, s[50:51]
    v_cndmask_b32 v96, v96, v141, s[52:53]
    v_bfi_b32 v96, {VM8}, {VTAG}, v96
    buffer_store_dword v96, v110, s[36:39], s44 offen offset:{O_P2} sc1
    """)
    stamp(19)
    a("s_branch L_FIN")

    a.label("L_POST2")
    a(f"""
    s_mov_b32 s84, 0
    s_mov_b32 s85, {8*REGION}
    s_mov_b32 s86, {16*REGION}
    s_mov_b32 s87, {24*REGION}
    """)
    def a_loads(base):
        for s in range(4):
            a(f"buffer_load_dwordx4 {rng(base+4*s,4)}, v27, s[36:39], s{84+s} offen offset:{O_OP} sc1")
        for s in range(4):
            a(f"buffer_load_dwordx2 {rng(base+16+2*s,2)}, v26, s[36:39], s{84+s} offen offset:{O_ML} sc1")
    def a_consume(B):
        M = B + 16
        a(f"""
        v_max3_f32 v48, v{M}, v{M+2}, v{M+4}
        v_max_f32 v48, v48, v{M+6}
        """)
        for s in range(4): a(f"v_sub_f32 v{50+s}, v{M+2*s}, v48")
        for s in range(4): a(f"v_exp_f32 v{50+s}, v{50+s}")
        a(f"""
        v_mul_f32 v49, v50, v{M+1}
        v_mul_f32 v56, v50, v{B}
        v_mul_f32 v57, v50, v{B+1}
        v_fma_f32 v49, v51, v{M+3}, v49
        v_mul_f32 v58, v50, v{B+2}
        v_mul_f32 v59, v50, v{B+3}
        v_fma_f32 v49, v52, v{M+5}, v49
        """)
        for i in range(4): a(f"v_fma_f32 v{56+i}, v51, v{B+4+i}, v{56+i}")
        a(f"v_fma_f32 v49, v53, v{M+7}, v49")
        for i in range(4): a(f"v_fma_f32 v{56+i}, v52, v{B+8+i}, v{56+i}")
        a("v_rcp_f32 v49, v49")
        for i in range(4): a(f"v_fma_f32 v{56+i}, v53, v{B+12+i}, v{56+i}")
    if cfg.sel:
        poll_sel([(f"buffer_load_dwordx4 {rng(64+4*s_,4)}, v27, s[36:39], s{84+s_} offen offset:{O_OP} sc1", f"v{64+4*s_+3}", None) for s_ in range(4)] +
                 [(f"buffer_load_dwordx2 {rng(80+2*s_,2)}, v26, s[36:39], s{84+s_} offen offset:{O_ML} sc1", f"v{80+2*s_+1}", None) for s_ in range(4)], itstamp=31)
        a_consume(64)
    else:
        poll2(a_loads, 8, 64, 88, lambda b: pick(vr(b, 16), 4) + pick(vr(b+16, 8), 2), a_consume, itstamp=31, space=cfg.sp_l)
    stamp(14)
    for i in range(4): a(f"v_mul_f32 v{56+i}, v{56+i}, v49")
    a(f"""
    v_cvt_pk_bf16_f32 v60, v56, v57
    v_cvt_pk_bf16_f32 v61, v58, v59
    ds_write_b64 v28, v[60:61]
    s_waitcnt lgkmcnt(0)
    s_barrier
    """)
    stamp(15)
    def h2_loads():
        a(f"buffer_load_dword v64, v22, s[36:39], 0 offen offset:{O_H2} sc1")
    if cfg.dh: a(f"s_sleep {cfg.dh}")
    sv = cfg.poll_sleep; cfg.poll_sleep = 1
    poll(h2_loads, ['v64'], itstamp=33)
    cfg.poll_sleep = sv
    stamp(17)
    a(f"""
    v_lshrrev_b32 v64, 16, v64
    ds_write_b16 v10, v64
    s_waitcnt lgkmcnt(0)
    s_barrier
    """)
    stamp(18)
    def gp_loads(base):
        for mat in range(2):
            for i in range(3):
                a(f"buffer_load_dwordx4 {rng(base+12*mat+4*i,4)}, v{23+i}, s[36:39], s88 offen offset:{512*mat} sc1")
    def gp_consume(base):
        for mat in range(2):
            B = base + 12*mat; D = 64 + 4*mat
            for h in range(2): pkadd(D+2*h, B+2*h, B+4+2*h)
            for h in range(2): pkadd(D+2*h, D+2*h, B+8+2*h)
    if cfg.dg: a(f"s_sleep {cfg.dg}")
    if cfg.sel:
        poll_sel([(f"buffer_load_dwordx4 {rng(80+12*mat+4*i,4)}, v{23+i}, s[36:39], s88 offen offset:{512*mat} sc1", f"v{80+12*mat+4*i+3}", 's[90:91]' if i == 2 else None)
                  for mat in range(2) for i in range(3)], itstamp=34)
        gp_consume(80)
    else:
        poll2(gp_loads, 6, 80, 112, lambda b: pick(vr(b, 8) + vr(b+12, 8), 4), gp_consume, itstamp=34, space=cfg.sp_l,
              extra=lambda b: (pick(vr(b+8, 4) + vr(b+20, 4), 4), 's[90:91]'))
    stamp(19)
    transred(64); transred(68)
    K0 = 0.7978845608028654; K1 = 0.044715
    a(f"""
    v_cvt_pk_bf16_f32 v72, v64, v68
    v_lshlrev_b32 v64, 16, v72         ; gate
    v_and_b32 v68, 0xffff0000, v72     ; up
    v_mul_f32 v72, v64, v64
    v_mul_f32 v72, {fl(K1)}, v72
    v_add_f32 v72, 1.0, v72
    v_mul_f32 v72, v72, v64
    v_mul_f32 v72, {fl(-2*K0*LOG2E)}, v72
    v_exp_f32 v72, v72
    v_add_f32 v72, 1.0, v72
    v_rcp_f32 v72, v72
    v_mul_f32 v64, v64, v72
    v_cvt_pk_bf16_f32 v64, v64, v64
    v_lshlrev_b32 v64, 16, v64
    v_mul_f32 v64, v64, v68
    v_cvt_pk_bf16_f32 v64, v64, v64
    v_add_u32 v73, {L_ACT}, v9
    ds_write_b16 v73, v64
    s_waitcnt lgkmcnt(0)
    s_barrier
    """)
    stamp(20)
    a("s_branch L_FIN")

    a.label("L_HUB")
    srd(56, 8, 2560)
    srd(60, 30, 2560)
    a(f"""
    s_setprio 3
    s_sub_u32 s54, s5, 30              ; b
    v_lshrrev_b32 v1, 4, v0            ; g
    v_and_b32 v2, 15, v0               ; c
    v_lshlrev_b32 v3, 4, v2            ; 16c
    s_lshl_b32 s55, s54, 8             ; 256*b
    v_lshl_add_u32 v4, v2, 2, v1       ; column 4c+g
    s_lshl_b32 s6, s3, 8
    v_lshlrev_b32 v9, 2, v4
    v_add_u32 v9, s6, v9
    v_lshlrev_b32 v4, 1, v4
    s_mul_i32 s6, s54, 1280
    s_lshl_b32 s7, s3, 7
    s_add_u32 s6, s6, s7
    v_add_u32 v11, s6, v4
    buffer_load_ushort v8, v11, s[56:59], 0 offen
    buffer_load_ushort v10, v11, s[60:63], 0 offen
    """)
    for qi, cb0 in enumerate((20, 30, 40, 50)):
        odd = 1 if cb0 >= 30 else 0
        a(f"""
        s_add_u32 s6, s3, {cb0 - 30*odd}
        s_lshl_b32 s6, s6, 3
        s_add_u32 s6, s6, {odd}
        s_lshl_b32 s6, s6, 13
        s_add_u32 s6, s6, s55
        v_lshlrev_b32 v5, 14, v1
        v_add3_u32 v{12+qi}, v5, v3, s6
        """)
    def mod_loads():
        for qi in range(4):
            a(f"buffer_load_dwordx4 {rng(48+4*qi,4)}, v{12+qi}, s[36:39], 0 offen offset:{O_MP} sc1")
    for i in range(6):
        a(f"""
        v_add_u32 v5, {4*i}, v1
        v_mul_u32_u24 v6, 86, v5
        v_lshrrev_b32 v6, 8, v6
        v_mul_u32_u24 v7, 3, v6
        v_sub_u32 v5, v5, v7
        v_mul_u32_u24 v5, 10, v5
        v_add_u32 v5, s3, v5
        v_lshlrev_b32 v5, 3, v5
        v_add_u32 v5, v5, v6
        v_lshlrev_b32 v5, 13, v5
        v_add3_u32 v{16+i}, v5, v3, s55
        """)
    a(f"""
    v_lshrrev_b32 v5, 5, v0
    v_lshlrev_b32 v5, 2, v5
    s_lshl_b32 s6, s3, 3
    s_add_u32 s6, s6, {L_S}
    v_add_u32 v29, s6, v5
    v_lshlrev_b32 v28, 3, v2
    v_add_u32 v28, {L_S}, v28
    s_mov_b32 s92, 0x03ff03ff
    s_mov_b32 s93, 0x03ff03ff
    """)
    poll(mod_loads, pick(vr(48, 16), 4), itstamp=30)
    for qi in range(4): transred(48 + 4*qi)
    a("""v_mov_b32 v32, v48
    v_mov_b32 v33, v52
    v_mov_b32 v34, v56
    v_mov_b32 v35, v60""")
    bfround(vr(32, 4), 40)
    a("v_add_f32 v34, 1.0, v34")
    bfround(['v34'], 40)
    a("v_lshlrev_b32 v30, 16, v8")
    stamp(14)
    PA, PB = 112, 136
    def p_loads(off):
        def f(base):
            for i in range(6):
                a(f"buffer_load_dwordx4 {rng(base+4*i,4)}, v{16+i}, s[36:39], 0 offen offset:{off} sc1")
        return f
    def p_chk(base): return pick(vr(base, 24), 4)
    def p_consume(base):
        for h in range(2):
            pkadd(64+2*h, base+2*h, base+4+2*h)
            pkadd(68+2*h, base+8+2*h, base+12+2*h)
            pkadd(72+2*h, base+16+2*h, base+20+2*h)
        for h in range(2): pkadd(64+2*h, 64+2*h, 68+2*h)
        for h in range(2): pkadd(64+2*h, 64+2*h, 72+2*h)
        transred(64)
    save = cfg.pipe
    def p_sel(off, itstamp):
        poll_sel([(f"buffer_load_dwordx4 {rng(PA+4*i,4)}, v{16+i}, s[36:39], 0 offen offset:{off} sc1", f"v{PA+4*i+3}", None) for i in range(6)], itstamp=itstamp)
        p_consume(PA)
    for _ in range(cfg.db1): a("s_sleep 16")
    if cfg.sel: p_sel(O_P1, 32)
    else:
        cfg.pipe = cfg.pipe_r
        poll2(p_loads(O_P1), 6, PA, PB, p_chk, p_consume, itstamp=32, space=cfg.sp_r)
        cfg.pipe = save
    stamp(16)
    a(f"""
    v_cvt_pk_bf16_f32 v64, v64, v64
    v_lshlrev_b32 v64, 16, v64
    v_mul_f32 v64, v32, v64
    v_cvt_pk_bf16_f32 v64, v64, v64
    v_lshlrev_b32 v64, 16, v64
    v_add_f32 v30, v30, v64
    v_cvt_pk_bf16_f32 v30, v30, v30
    v_lshlrev_b32 v30, 16, v30         ; x1
    v_mul_f32 v65, v30, v30
    v_mov_b32 v64, v30
    """)
    row16_sum(['v64', 'v65'])
    a(f"""
    v_permlane32_swap_b32 v64, v65
    v_add_f32 v64, v64, v65
    v_mov_b32 v65, v64
    v_permlane16_swap_b32 v64, v65
    v_add_f32 v64, v64, v65
    s_mov_b32 exec_lo, 1
    s_mov_b32 exec_hi, 1
    ds_write_b32 v29, v64
    s_mov_b64 exec, -1
    s_waitcnt lgkmcnt(0)
    s_barrier
    ds_read_b64 v[68:69], v28
    s_waitcnt lgkmcnt(0)
    v_cndmask_b32 v68, 0, v68, s[92:93]
    v_cndmask_b32 v69, 0, v69, s[92:93]
    """)
    stamp(17)
    row16_sum(['v68', 'v69'])
    a(f"""
    v_mul_f32 v68, {fl(1/640)}, v68
    v_mul_f32 v69, {fl(1/640)}, v69
    v_fma_f32 v69, -v68, v68, v69
    v_max_f32 v69, 0, v69
    """)
    ln_finish('v68', 'v69', 70)
    a(f"""
    v_rcp_f32 v71, v69
    v_sub_f32 v64, v30, v68
    v_cvt_pk_bf16_f32 v64, v64, v64
    v_lshlrev_b32 v64, 16, v64
    """)
    fdiv('v72', 'v64', 'v71', 'v69', 'v70')
    a(f"""
    v_cvt_pk_bf16_f32 v72, v72, v72
    v_lshlrev_b32 v72, 16, v72
    v_mul_f32 v72, v72, v34
    v_cvt_pk_bf16_f32 v72, v72, v72
    v_lshlrev_b32 v72, 16, v72
    v_add_f32 v72, v72, v33
    v_cvt_pk_bf16_f32 v72, v72, v72
    v_lshlrev_b32 v72, 16, v72
    v_bfi_b32 v72, {VM8}, {VTAG}, v72
    """)
    pub_local(f"buffer_store_dword v72, v9, s[36:39], s44 offen offset:{O_H2}")
    stamp(18)
    a(f"""
    s_and_b32 s6, s3, 7
    s_cmp_eq_u32 s6, s4
    s_cbranch_scc0 L_FIN
    """)
    for _ in range(cfg.dc): a("s_sleep 16")
    if cfg.sel: p_sel(O_P2, 35)
    else:
        cfg.pipe = cfg.pipe_c
        a("s_waitcnt vmcnt(0)")
        poll2(p_loads(O_P2), 6, PA, PB, p_chk, p_consume, itstamp=35, space=cfg.sp_r)
        cfg.pipe = save
    stamp(21)
    a(f"""
    v_cvt_pk_bf16_f32 v64, v64, v64
    v_lshlrev_b32 v64, 16, v64
    v_mul_f32 v64, v35, v64
    v_cvt_pk_bf16_f32 v64, v64, v64
    v_lshlrev_b32 v64, 16, v64
    v_add_f32 v64, v30, v64
    v_cvt_pk_bf16_f32 v64, v64, v64
    buffer_store_short v64, v11, s[60:63], 0 offen
    s_or_b32 s6, s54, s3
    s_cmp_eq_u32 s6, 0
    s_cbranch_scc0 L_NOEPOCH
    ds_read_b32 v47, {VF} offset:{F_EPOCH}
    v_mov_b32 v2, {EPOCH_OFF}
    s_waitcnt lgkmcnt(0)
    s_mov_b64 exec, 1
    buffer_store_dword v47, v2, s[36:39], 0 offen sc1
    s_mov_b64 exec, -1
    L_NOEPOCH:
    """)
    stamp(22)
    a.label("L_FIN")
    prof_out()
    a.label("L_END")
    a("s_endpgm")
    a.label("L_CODE_END")
    body = a.text()
    body += "    .p2align 10, 0\n" if False else ""
    body += f"L_PAD_START:\n    .fill ((1024 - ((L_PAD_START - {KNAME}) % 1024)) % 1024) / 4, 4, 0xbf810000\nL_PAD_END:\n"

    hdr = open('adaLN_cond__sliding_block_cached__geglu_ffn__decode.s.ref').read().split('; Override')[0]
    return f"""{hdr}; Generated by gen/gen3.py (hand-designed schedule; see that file for the structure).
; @launch grid=(256,1,1) block=(768,1,1) lds={LDS_BYTES}
.amdgcn_target "amdgcn-amd-amdhsa--gfx950"
.text
.globl {KNAME}
.p2align 8
.type {KNAME},@function
{KNAME}:
{body}
.section .rodata,"a"
.p2align 6
.amdhsa_kernel {KNAME}
  .amdhsa_next_free_vgpr 168
  .amdhsa_next_free_sgpr 102
  .amdhsa_accum_offset 168
  .amdhsa_group_segment_fixed_size 0
  .amdhsa_kernarg_size 112
  .amdhsa_user_sgpr_count 2
  .amdhsa_user_sgpr_kernarg_segment_ptr 1
  .amdhsa_system_sgpr_workgroup_id_x 1
  .amdhsa_float_denorm_mode_32 3
.end_amdhsa_kernel
"""

if __name__ == "__main__":
    class C(Cfg): pass
    for arg in sys.argv[2:]:
        k, v = arg.split('=')
        setattr(C, k, int(v))
    import subprocess, re
    def size_of(text):
        open('_g.s', 'w').write(text)
        subprocess.run(['clang', '-x', 'assembler', '-target', 'amdgcn-amd-amdhsa', '-mcpu=gfx950', '-c', '_g.s', '-o', '_g.o'], check=True)
        out = subprocess.run(['llvm-readelf', '-S', '_g.o'], capture_output=True, text=True).stdout
        m = re.search(r'\.text\s+PROGBITS\s+\S+\s+\S+\s+(\S+)', out)
        return int(m.group(1), 16)
    C.npiece = 16
    n = size_of(gen(C)) // 1024
    C.npiece = n
    text = gen(C)
    assert size_of(text) // 1024 == n
    open(sys.argv[1], 'w').write(text)
```

```python
import sys, struct
from asmlib import Asm

KNAME = "adaLN_cond__sliding_block_cached__geglu_ffn__decode_kernel"
REGION = 8192
O_MP, O_QP, O_OP, O_ML, O_XC, O_ST, O_P1, O_P2, O_GP = 0, 512, 2048, 2816, 2880, 2944, 3072, 3584, 4096
O_H2 = 3072
EPOCH_OFF = 256 * REGION
WS_BYTES = 256 * REGION + 128
PROF_OFF = 4 << 20
L_V = 0
L_W = 98304
L_SC = 131072
L_H = 131712
L_Q = 132032
L_S = 132416
L_P = 133440
L_AO = 133952
L_H2 = 134976
L_ACT = 135232
L_FLG = 135488
L_MW = 135680
LDS_BYTES = L_MW + 24576
F_KGO, F_MLAND, F_WQLAND, F_SCRDY, F_QRDY, F_SCNT, F_TAG, F_FAST, F_HRDY, F_QS, F_EPOCH, F_PRDY, F_P1ACK, F_KISS = [4 * i for i in range(14)]
OOB = 0x80000000
LOG2E = 1.4426950408889634
SCALE = 192 ** -0.5
def f2u(x): return struct.unpack('<I', struct.pack('<f', x))[0]
def fl(x): return hex(f2u(x))
VF, VT, VM8, VTAG, VC, VC2, VP1, VP0 = 'v160', 'v161', 'v162', 'v163', 'v164', 'v165', 'v166', 'v167'
R_K, R_KX, R_LD, R_CH, R_P0, R_P0X, R_P1, R_P1X, R_LDX, R_CHX = 1, 2, 3, 4, 5, 6, 7, 8, 9, 10

class Cfg:
    prof = 0
    WL = 32
    WK = 3
    WV = 4
    SIDX = 20
    spin_max = 1 << 20
    poll_max = 1 << 15
    poll_sleep = 0
    fast = 1
    nt = 1
    pipe = 0
    pipe_r = 0
    sel = 1
    hub = 1
    ksleep = 1
    dffn = 0
    kgo = 1
    db1 = 0
    dc = 0
    pipe_c = 0
    dm = 0
    dq = 0
    dg = 0
    dh = 0
    ffn_ack = 1
    prea = 1
    WVB = 0
    WVL = 11
    vstart = 8
    pf_top = 1
    npiece = 1
    pf_chunks = 2
    sp_m = 16
    sp_q = 16
    sp_l = 1
    sp_r = 2
    chk4 = 0

def gen(cfg=Cfg):
    a = Asm()
    NT = 'nt' if cfg.nt else ''
    def stamp(i):
        if cfg.prof == 1 or (cfg.prof == 2 and i in (0, 12, 22)):
            a(f"""
            s_memrealtime s[98:99]
            s_waitcnt lgkmcnt(0)
            v_writelane_b32 {VP0}, s98, {i}
            """)
    def prof_out():
        if cfg.prof:
            a(f"""
            s_mul_i32 s6, s2, 12
            s_add_u32 s6, s6, s3
            s_lshl_b32 s6, s6, 8
            s_add_u32 s6, s6, {PROF_OFF}
            v_lshlrev_b32 {VP1}, 2, v0
            v_add_u32 {VP1}, s6, {VP1}
            s_mov_b32 s38, 0x7fffffff
            buffer_store_dword {VP0}, {VP1}, s[36:39], 0 offen
            s_mov_b32 s38, {WS_BYTES}
            """)
    def spin(flag, target, sleep=1):
        L = a.new('SP'); D = a.new('SD')
        a(f"""
        s_mov_b32 s96, 0
        {L}:
        ds_read_b32 {VT}, {VF} offset:{flag}
        s_add_u32 s96, s96, 1
        s_waitcnt lgkmcnt(0)
        v_readfirstlane_b32 s97, {VT}
        s_cmp_ge_u32 s97, {target}
        s_cbranch_scc1 {D}
        s_cmp_gt_u32 s96, {cfg.spin_max}
        s_cbranch_scc1 {D}
        s_sleep {sleep}
        s_branch {L}
        {D}:
        """)
    def setflag(flag, val=1):
        a(f"""
        v_mov_b32 {VT}, {val}
        ds_write_b32 {VF}, {VT} offset:{flag}
        """)
    def addflag(flag):
        a(f"""
        v_mov_b32 {VT}, 1
        s_mov_b64 exec, 1
        ds_add_u32 {VF}, {VT} offset:{flag}
        s_mov_b64 exec, -1
        """)
    def pick(regs, step):
        regs = list(regs)
        return regs if cfg.chk4 else regs[step-1::step]
    def tagcheck(regs, mask=None, extra=None):
        r = list(regs)
        a(f"v_xor_b32 {VC}, s95, {r[0]}")
        for x in r[1:]:
            a(f"v_bitop3_b32 {VC}, {VC}, {x}, s95 bitop3:0xf6")
        if extra:
            er, em = extra
            a(f"v_xor_b32 {VC2}, s95, {er[0]}")
            for x in er[1:]:
                a(f"v_bitop3_b32 {VC2}, {VC2}, {x}, s95 bitop3:0xf6")
            a(f"v_cndmask_b32 {VC2}, 0, {VC2}, {em}")
            a(f"v_or_b32 {VC}, {VC}, {VC2}")
        a(f"v_and_b32 {VC}, 0xff, {VC}")
        a(f"v_cmp_ne_u32 vcc, 0, {VC}")
        a(f"s_and_b64 vcc, vcc, {mask if mask else 'exec'}")
    def poll(loadfn, regs, mask=None, itstamp=None, extra=None):
        L = a.new('PL'); D = a.new('PD')
        a("s_mov_b32 s96, 0")
        a.label(L)
        loadfn()
        a("s_add_u32 s96, s96, 1")
        a("s_waitcnt vmcnt(0)")
        tagcheck(regs, mask, extra)
        a(f"""
        s_cbranch_scc0 {D}
        s_cmp_gt_u32 s96, {cfg.poll_max}
        s_cbranch_scc1 {D}
        """)
        if cfg.poll_sleep: a(f"s_sleep {cfg.poll_sleep}")
        a(f"""
        s_branch {L}
        {D}:
        """)
        if cfg.prof and itstamp is not None:
            a(f"v_writelane_b32 {VP0}, s96, {itstamp}")
    def poll2(loadfn, nloads, baseA, baseB, chk, consume, itstamp=None, space=2, mask=None, extra=None):
        ex = (lambda b: extra(b)) if extra else (lambda b: None)
        if not cfg.pipe:
            poll(lambda: loadfn(baseA), chk(baseA), itstamp=itstamp, mask=mask, extra=ex(baseA)); consume(baseA); return
        L = a.new('QL'); DA = a.new('QA'); DB = a.new('QB'); J = a.new('QJ')
        a("s_mov_b32 s96, 0")
        loadfn(baseA)
        if space: a(f"s_sleep {space}")
        a.label(L)
        loadfn(baseB)
        a("s_add_u32 s96, s96, 1")
        a(f"s_waitcnt vmcnt({nloads})")
        tagcheck(chk(baseA), mask, ex(baseA))
        a(f"s_cbranch_scc0 {DA}")
        loadfn(baseA)
        a(f"s_waitcnt vmcnt({nloads})")
        tagcheck(chk(baseB), mask, ex(baseB))
        a(f"""s_cbranch_scc0 {DB}
        s_cmp_gt_u32 s96, {cfg.poll_max}
        s_cbranch_scc0 {L}
        {DB}:""")
        consume(baseB)
        a(f"s_branch {J}")
        a.label(DA)
        consume(baseA)
        a.label(J)
        if cfg.prof == 1 and itstamp is not None:
            a(f"v_writelane_b32 {VP0}, s96, {itstamp}")
    MP_ = [64, 66, 68, 70, 72, 76, 80, 82]
    def poll_sel(loads, itstamp=None, sleep=0, pairs=None, pre=False):
        pairs = pairs or MP_
        L = a.new('SL'); D = a.new('SE')
        if not pre:
            for t, _, _ in loads: a(t)
        a("s_mov_b32 s96, 0")
        a.label(L)
        a("s_add_u32 s96, s96, 1")
        a("s_waitcnt vmcnt(0)")
        for i, (t, r, m) in enumerate(loads):
            if isinstance(r, tuple): a(f"v_cmp_ne_u32 s[{pairs[i]}:{pairs[i]+1}], s94, {r[1]}")
            else: a(f"v_cmp_ne_u32_sdwa s[{pairs[i]}:{pairs[i]+1}], {r}, s95 src0_sel:BYTE_0 src1_sel:BYTE_0")
        for i, (t, r, m) in enumerate(loads):
            if m: a(f"s_and_b64 s[{pairs[i]}:{pairs[i]+1}], s[{pairs[i]}:{pairs[i]+1}], {m}")
        if len(loads) == 1:
            a(f"s_cmp_lg_u64 s[{pairs[0]}:{pairs[0]+1}], 0")
        else:
            a(f"s_or_b64 vcc, s[{pairs[0]}:{pairs[0]+1}], s[{pairs[1]}:{pairs[1]+1}]")
            for i in range(2, len(loads)): a(f"s_or_b64 vcc, vcc, s[{pairs[i]}:{pairs[i]+1}]")
        a(f"""s_cbranch_scc0 {D}
        s_cmp_gt_u32 s96, {cfg.poll_max}
        s_cbranch_scc1 {D}""")
        if sleep: a(f"s_sleep {sleep}")
        for i, (t, r, m) in enumerate(loads):
            S = a.new('SK')
            a(f"s_cmp_lg_u64 s[{pairs[i]}:{pairs[i]+1}], 0")
            a(f"s_cbranch_scc0 {S}")
            a(t)
            a.label(S)
        a(f"s_branch {L}")
        a.label(D)
        for t, r, m in loads:
            if not isinstance(r, tuple): a(f"v_and_b32 {r}, 0xffffff00, {r}")
        if cfg.prof == 1 and itstamp is not None:
            a(f"v_writelane_b32 {VP0}, s96, {itstamp}")
    def tagit(regs):
        for r in regs: a(f"v_bfi_b32 {r}, {VM8}, {VTAG}, {r}")
    def gettag():
        spin(F_TAG, 0x100)
        a("s_and_b32 s95, s97, 0xff")
        a(f"v_mov_b32 {VTAG}, s95")
    def pub_local(instr):
        if not cfg.fast:
            a(instr + " sc1"); return
        F = a.new('PF'); D = a.new('PE')
        a(f"""
        s_cmp_eq_u32 s75, 2
        s_cbranch_scc1 {F}
        {instr} sc1
        s_branch {D}
        {F}:
        {instr}
        {D}:
        """)
    def vr(base, n): return [f"v{base+i}" for i in range(n)]
    def rng(base, n): return f"v[{base}:{base+n-1}]"
    def srd(s, ptr, size):
        a(f"""
        s_mov_b32 s{s}, s{ptr}
        s_mov_b32 s{s+1}, s{ptr+1}
        s_mov_b32 s{s+2}, {size}
        s_mov_b32 s{s+3}, 0x00020000
        """)
    def xrow16_sum(regs, t, op='v_add_f32'):
        for sw in ('v_permlane16_swap_b32', 'v_permlane32_swap_b32'):
            for i, r in enumerate(regs): a(f"v_mov_b32 v{t+i}, {r}")
            for i, r in enumerate(regs): a(f"{sw} v{t+i}, {r}")
            for i, r in enumerate(regs): a(f"{op} {r}, {r}, v{t+i}")
    def transred(b):
        a(f"""v_permlane32_swap_b32 v{b}, v{b+2}
        v_permlane32_swap_b32 v{b+1}, v{b+3}
        v_add_f32 v{b}, v{b}, v{b+2}
        v_add_f32 v{b+1}, v{b+1}, v{b+3}
        v_permlane16_swap_b32 v{b}, v{b+1}
        v_add_f32 v{b}, v{b}, v{b+1}""")
    def row16_sum(regs, op='v_add_f32'):
        for rot in (8, 4, 2, 1):
            for r in regs: a(f"{op}_dpp {r}, {r}, {r} row_ror:{rot} row_mask:0xf bank_mask:0xf")
    def bfround(regs, t):
        regs = list(regs)
        for i in range(0, len(regs), 2):
            if i + 1 < len(regs):
                a(f"""v_cvt_pk_bf16_f32 v{t}, {regs[i]}, {regs[i+1]}
                v_lshlrev_b32 {regs[i]}, 16, v{t}
                v_and_b32 {regs[i+1]}, 0xffff0000, v{t}""")
            else:
                a(f"""v_cvt_pk_bf16_f32 {regs[i]}, {regs[i]}, {regs[i]}
                v_lshlrev_b32 {regs[i]}, 16, {regs[i]}""")
    def unpack(src, lo, hi):
        a(f"""v_lshlrev_b32 {lo}, 16, {src}
        v_and_b32 {hi}, 0xffff0000, {src}""")
    def fdiv(dst, num, den_rcp, den, t):
        a(f"""v_mul_f32 {dst}, {num}, {den_rcp}
        v_fma_f32 {t}, -{dst}, {den}, {num}
        v_fma_f32 {dst}, {t}, {den_rcp}, {dst}""")
    def ln_finish(mean, var, t):
        bfround([mean, var], t)
        a(f"v_add_f32 {var}, {fl(1e-5)}, {var}")
        bfround([var], t)
        a(f"v_sqrt_f32 {var}, {var}")
        bfround([var], t)
    def pkadd(d, x, y): a(f"v_pk_add_f32 {rng(d,2)}, {rng(x,2)}, {rng(y,2)}")
    def tr_geom(b):
        a(f"""
        v_lshrrev_b32 v{b}, 4, v0
        v_lshrrev_b32 v{b+1}, 2, v0
        v_and_b32 v{b+1}, 3, v{b+1}
        v_and_b32 v{b+2}, 3, v0
        v_lshrrev_b32 v{b+3}, 1, v{b+1}
        v_and_b32 v{b+4}, 1, v{b}
        v_lshlrev_b32 v{b+4}, 1, v{b+4}
        v_or_b32 v{b+3}, v{b+3}, v{b+4}
        v_lshlrev_b32 v{b+4}, 3, v{b}
        v_add_u32 v{b+4}, v{b+4}, v{b+1}
        v_lshlrev_b32 v{b+5}, 3, v{b+2}
        """)
    def off128(dst_even, dst_odd, rs, t):
        a(f"""
        v_lshrrev_b32 v{t}, 3, v0
        v_and_b32 v{t+1}, 7, v0
        v_lshrrev_b32 v{t+2}, 1, v{t}
        v_and_b32 v{t+2}, 1, v{t+2}
        v_lshrrev_b32 v{t+3}, 1, v{t+1}
        v_xor_b32 v{t+3}, v{t+3}, v{t+2}
        v_lshlrev_b32 v{t+3}, 5, v{t+3}
        v_and_b32 v{t+2}, 1, v{t+1}
        v_lshlrev_b32 v{t+2}, 4, v{t+2}
        v_or_b32 v{t+3}, v{t+3}, v{t+2}
        """)
        if isinstance(rs, int): a(f"v_mul_u32_u24 {dst_even}, {rs}, v{t}")
        else: a(f"v_mul_lo_u32 {dst_even}, v{t}, {rs}")
        a(f"""
        v_add_u32 {dst_even}, {dst_even}, v{t+3}
        v_xor_b32 {dst_odd}, 64, {dst_even}
        """)
    def off384(even0, odd0, rs, t):
        for ph in range(3):
            a(f"""
            v_add_u32 v{t}, {64*ph}, v0
            v_mul_u32_u24 v{t+1}, 2731, v{t}
            v_lshrrev_b32 v{t+1}, 16, v{t+1}
            v_mul_u32_u24 v{t+2}, 24, v{t+1}
            v_sub_u32 v{t+2}, v{t}, v{t+2}
            v_lshrrev_b32 v{t+3}, 1, v{t+1}
            v_and_b32 v{t+3}, 1, v{t+3}
            v_lshrrev_b32 v{t}, 1, v{t+2}
            v_xor_b32 v{t}, v{t}, v{t+3}
            v_lshlrev_b32 v{t}, 5, v{t}
            v_and_b32 v{t+2}, 1, v{t+2}
            v_lshlrev_b32 v{t+2}, 4, v{t+2}
            v_or_b32 v{t}, v{t}, v{t+2}
            v_mul_u32_u24 v{t+2}, {rs}, v{t+1}
            v_add_u32 v{even0+ph}, v{t+2}, v{t}
            v_xor_b32 v{odd0+ph}, 64, v{even0+ph}
            """)

    a(f"""
    s_cmp_ge_u32 s2, 256
    s_cbranch_scc1 L_END
    s_load_dwordx16 s[8:23], s[0:1], 0
    s_load_dwordx8 s[24:31], s[0:1], 64
    s_load_dwordx4 s[32:35], s[0:1], 96
    v_lshrrev_b32 v1, 6, v0
    v_and_b32 v0, 63, v0
    s_getpc_b64 s[56:57]
    .Lpcref:
    s_lshr_b32 s5, s2, 3
    v_readfirstlane_b32 s3, v1
    s_sub_u32 s56, s56, .Lpcref-{KNAME}
    s_subb_u32 s57, s57, 0
    s_and_b32 s4, s2, 7
    """)
    if cfg.pf_top:
        a(f"""
        s_cmp_ge_u32 s3, {cfg.pf_chunks}
        s_cbranch_scc1 L_NOPF
        s_mul_i32 s6, s5, {cfg.pf_chunks}
        s_add_u32 s6, s6, s3
        s_mul_i32 s7, s6, {(65536 + cfg.npiece - 1)//cfg.npiece}
        s_lshr_b32 s7, s7, 16
        s_mul_i32 s7, s7, {cfg.npiece}
        s_sub_u32 s6, s6, s7
        s_lshl_b32 s6, s6, 10
        v_lshl_add_u32 v2, v0, 4, s6
        global_load_dwordx4 v[152:155], v2, s[56:57]
        L_NOPF:
        """)
    a(f"v_mov_b32 {VF}, {L_FLG}")
    if cfg.prof: a(f"v_mov_b32 {VP0}, 0")
    a(f"""
    v_and_b32 {VM8}, 3, v0
    v_add_u32 {VM8}, 1, {VM8}
    v_lshrrev_b32 {VM8}, 2, {VM8}
    v_mul_u32_u24 {VM8}, 0xff, {VM8}
    """)
    a(f"""
    s_lshr_b32 s40, s5, 3              ; hl
    s_lshl_b32 s41, s4, 2
    s_add_u32 s41, s41, s40            ; head
    s_mul_i32 s42, s5, 26
    s_lshr_b32 s42, s42, 8             ; q10 = j/10
    s_mul_i32 s43, s42, 10
    s_sub_u32 s43, s5, s43             ; kj = j%10
    s_lshl_b32 s44, s2, 13
    s_lshr_b32 s45, s5, 2
    s_and_b32 s45, s45, 1
    s_and_b32 s46, s5, 7               ; r
    s_lshl_b32 s6, s45, 5
    s_add_u32 s6, s6, s41
    s_mul_i32 s47, s6, 1572864
    s_and_b32 s6, s5, 3
    s_mul_i32 s6, s6, 98304
    s_add_u32 s47, s47, s6
    s_add_u32 s47, s47, 1179648
    s_mov_b32 s48, 0xffff0000
    s_mov_b32 s49, 0
    s_mov_b32 s50, 0
    s_mov_b32 s51, 0x0000ffff
    s_mov_b32 s52, 0
    s_mov_b32 s53, 0xffff0000
    s_mov_b32 s75, 1
    s_mov_b32 s79, 63
    s_cmp_lt_u32 s3, 8
    s_cbranch_scc1 L_KWAVE
    s_cmp_eq_u32 s3, 9
    s_cbranch_scc1 L_CHAIN
    s_cmp_gt_u32 s3, 9
    s_cbranch_scc1 L_POST
    """)
    def start_sync():
        a("s_waitcnt lgkmcnt(0)")
        a("s_barrier")
        stamp(0)
        srd(36, 34, WS_BYTES)

    W = cfg.WL
    a(f"s_mov_b32 s78, {R_LD}")
    a("s_setprio 2")
    off128('v10', 'v11', 7680, 1)
    off384(12, 15, 12288, 1)
    a(f"""
    s_and_b32 s6, s4, 3
    s_mul_i32 s84, s6, {160*7680}
    s_lshr_b32 s6, s4, 2
    s_mul_i32 s6, s6, 30
    s_add_u32 s6, s6, s5
    s_lshl_b32 s6, s6, 7
    s_add_u32 s84, s84, s6
    s_mul_i32 s87, s46, {80*12288}
    s_mul_i32 s6, s41, 384
    s_add_u32 s87, s87, s6
    s_mov_b32 s85, {L_MW}
    s_mov_b32 s86, 0
    """)
    start_sync()
    srd(56, 28, 4915200)
    srd(60, 14, 7864320)
    a(f"""
    s_cmp_lt_u32 s5, 30
    s_cbranch_scc1 L_LD_M
    s_mov_b32 s78, {R_LDX}
    s_branch L_LD_Q0
    L_LD_M:
    """)
    for par in range(2):
        a(f"""s_waitcnt vmcnt({W-1})
        s_mov_b32 m0, s85
        s_add_u32 s85, s85, 1024
        buffer_load_dwordx4 v{10+par}, s[56:59], s84 offen {NT} lds
        s_add_u32 s84, s84, {8*7680}""")
    a(f"""
    s_add_u32 s86, s86, 1
    s_cmp_lt_u32 s86, 10
    s_cbranch_scc1 L_LD_M
    L_LD_Q0:
    s_mov_b32 s85, {L_W}
    s_mov_b32 s86, 0
    """)
    if cfg.kgo == 1: setflag(F_KGO)
    a.label("L_LD_Q")
    for par in range(2):
        for ph in range(3):
            a(f"""s_waitcnt vmcnt({W-1})
            s_mov_b32 m0, s85
            s_add_u32 s85, s85, 1024
            buffer_load_dwordx4 v{12+3*par+ph}, s[60:63], s87 offen {NT} lds""")
        a(f"s_add_u32 s87, s87, {8*12288}")
    a(f"""
    s_add_u32 s86, s86, 1
    """)
    if cfg.kgo == 1:
        a(f"""
        s_cmp_eq_u32 s86, 2
        s_cbranch_scc0 L_LD_Q1
        s_waitcnt vmcnt(12)
        """)
        setflag(F_MLAND); stamp(2)
        a.label("L_LD_Q1")
    a(f"""
    s_cmp_lt_u32 s86, 5
    s_cbranch_scc1 L_LD_Q
    """)
    if cfg.kgo == 0: setflag(F_KGO)
    stamp(1)
    if cfg.kgo == 0:
        a("s_waitcnt vmcnt(30)")
        setflag(F_MLAND); stamp(2)
    a("s_waitcnt vmcnt(0)")
    setflag(F_WQLAND)
    stamp(3)
    for r in list(range(9, 12)) + list(range(12, 30)): a(f"v_mov_b32 v{r}, {OOB:#x}")
    a("s_mov_b32 s82, 0")
    a("s_branch L_VLOAD")

    a.label("L_KWAVE")
    a(f"""
    s_mov_b32 s78, {R_K}
    s_cmp_lt_u32 s5, 30
    s_cbranch_scc1 L_K_ROLE
    s_mov_b32 s78, {R_KX}
    L_K_ROLE:
    """)
    a(f"""
    s_cmp_lg_u32 s3, 0
    s_cbranch_scc1 L_NOZ
    v_mov_b32 v2, 0
    v_lshlrev_b32 v3, 2, v0
    v_add_u32 v3, {L_FLG}, v3
    s_mov_b64 exec, 0xffff
    ds_write_b32 v3, v2
    s_mov_b64 exec, -1
    L_NOZ:
    v_lshrrev_b32 v1, 3, v0
    v_mul_u32_u24 v1, 384, v1
    v_and_b32 v2, 7, v0
    v_lshlrev_b32 v2, 4, v2
    v_add_u32 v1, v1, v2
    s_mul_i32 s84, s3, 12288
    s_add_u32 s84, s84, s47
    """)
    KV = 8
    start_sync()
    srd(56, 10, 100663296)
    spin(F_KGO, 1)
    stamp(1)
    def scores():
        spin(F_QRDY, 1, cfg.ksleep)
        stamp(4)
        a(f"""
        v_add_u32 v3, {L_Q}, v2
        ds_read_b128 v[56:59], v3
        ds_read_b128 v[60:63], v3 offset:128
        ds_read_b128 v[64:67], v3 offset:256
        v_mov_b32 v68, 0
        v_mov_b32 v69, 0
        v_mov_b32 v70, 0
        v_mov_b32 v71, 0
        s_waitcnt lgkmcnt(0)
        """)
        for ph in range(3):
            for d in range(4):
                for gi in range(4):
                    a(f"v_dot2_f32_bf16 v{68+gi}, v{KV+4*(3*gi+ph)+d}, v{56+4*ph+d}, v{68+gi}")
        for mode in ("quad_perm:[1,0,3,2]", "quad_perm:[2,3,0,1]", "row_half_mirror"):
            for gi in range(4):
                a(f"v_add_f32_dpp v{68+gi}, v{68+gi}, v{68+gi} {mode} row_mask:0xf bank_mask:0xf")
        bfround(vr(68, 4), 7)
        for gi in range(4): a(f"v_mul_f32 v{68+gi}, {fl(SCALE)}, v{68+gi}")
        bfround(vr(68, 4), 7)
        a(f"""
        s_mov_b32 s88, 0x02020202
        s_mov_b32 s89, 0x02020202
        s_mov_b32 s90, 0x04040404
        s_mov_b32 s91, 0x04040404
        s_mov_b32 s92, 0x08080808
        s_mov_b32 s93, 0x08080808
        v_cndmask_b32 v68, v68, v69, s[88:89]
        v_cndmask_b32 v68, v68, v70, s[90:91]
        v_cndmask_b32 v68, v68, v71, s[92:93]
        v_and_b32 v3, 7, v0
        v_lshlrev_b32 v3, 5, v3
        v_lshrrev_b32 v4, 3, v0
        v_lshlrev_b32 v4, 2, v4
        v_add_u32 v3, v3, v4
        s_lshl_b32 s6, s3, 7
        s_add_u32 s6, s6, {L_S}
        v_add_u32 v3, s6, v3
        s_mov_b32 exec_lo, 0x0f0f0f0f
        s_mov_b32 exec_hi, 0x0f0f0f0f
        ds_write_b32 v3, v68
        s_mov_b64 exec, -1
        s_waitcnt lgkmcnt(0)
        """)
        addflag(F_SCNT)
        stamp(5)
    WK = cfg.WK
    for idx in range(12):
        gi, ph = idx // 3, idx % 3
        if idx >= WK: a(f"s_waitcnt vmcnt({WK-1})")
        if ph == 0: a(f"s_add_u32 s86, s84, {3072*gi}")
        a(f"buffer_load_dwordx4 {rng(KV+4*idx,4)}, v1, s[56:59], s86 offen offset:{128*ph} {NT}")
    addflag(F_KISS)
    stamp(3)
    a("s_waitcnt vmcnt(0)")
    stamp(2)
    scores()
    a("s_branch L_PV")

    a.label("L_VLOAD")
    srd(56, 12, 100663296)
    srd(60, 16, 7864320)
    off384(48, 56, 384, 60)
    off128('v51', 'v52', 1280, 60)
    a(f"""
    s_mul_i32 s83, s82, 11
    s_and_b32 s6, s83, 1
    s_lshl_b32 s6, s6, 6
    v_xor_b32 v48, s6, v48
    v_xor_b32 v49, s6, v49
    v_xor_b32 v50, s6, v50
    v_xor_b32 v51, s6, v51
    s_mul_i32 s6, s83, 3072
    s_add_u32 s84, s6, s47
    s_add_u32 s85, s6, {L_V}
    s_cmp_eq_u32 s82, 2
    s_cselect_b32 s86, 10, 11
    s_mov_b32 s89, s86
    s_mul_i32 s80, s4, 768
    s_lshl_b32 s6, s42, 8
    s_add_u32 s80, s80, s6
    s_lshl_b32 s6, s83, 3
    s_add_u32 s80, s80, s6
    s_mul_i32 s80, s80, 1280
    s_lshl_b32 s6, s43, 7
    s_add_u32 s80, s80, s6
    s_lshl_b32 s81, s83, 10
    s_add_u32 s81, s81, {L_W}
    """)
    spin(F_KISS, cfg.vstart)
    stamp(5)
    def vgroup(Wn):
        for ph in range(3):
            a(f"""s_waitcnt vmcnt({Wn-1})
            s_mov_b32 m0, s85
            s_add_u32 s85, s85, 1024
            buffer_load_dwordx4 v{48+ph}, s[56:59], s84 offen {NT} lds""")
        a(f"""
        v_xor_b32 v48, 64, v48
        v_xor_b32 v49, 64, v49
        v_xor_b32 v50, 64, v50
        s_add_u32 s84, s84, 3072
        s_sub_u32 s86, s86, 1
        """)
    a.label("L_VL_V")
    if cfg.WVB: a(f"ds_read_b32 {VT}, {VF} offset:{F_QRDY}")
    vgroup(cfg.WVL)
    if cfg.WVB:
        a(f"""
        s_cmp_eq_u32 s86, 0
        s_cbranch_scc1 L_VL_VD
        s_waitcnt lgkmcnt(0)
        v_readfirstlane_b32 s97, {VT}
        s_cmp_eq_u32 s97, 0
        s_cbranch_scc1 L_VL_V
        L_VL_V2:
        """)
        vgroup(cfg.WVB)
        a(f"""
        s_cmp_lg_u32 s86, 0
        s_cbranch_scc1 L_VL_V2
        L_VL_VD:
        s_waitcnt lgkmcnt(0)
        """)
    else:
        a(f"""
        s_cmp_lg_u32 s86, 0
        s_cbranch_scc1 L_VL_V
        """)
    a(f"""
    s_mov_b32 s79, 0
    s_cmp_ge_u32 s5, 30
    s_cbranch_scc1 L_PV
    """)
    stamp(6)
    spin(F_QS, 3)
    a(f"""
    s_mov_b32 s79, s89
    L_VL_W:
    s_mov_b32 m0, s81
    s_add_u32 s81, s81, 1024
    buffer_load_dwordx4 v51, s[60:63], s80 offen {NT} lds
    v_xor_b32 v51, 64, v51
    s_add_u32 s80, s80, {8*1280}
    s_sub_u32 s89, s89, 1
    s_cmp_lg_u32 s89, 0
    s_cbranch_scc1 L_VL_W
    s_branch L_PV
    """)

    a.label("L_CHAIN")
    a(f"""s_mov_b32 s78, {R_CH}
    s_cmp_lt_u32 s5, 30
    s_cbranch_scc1 L_CH_ROLE
    s_mov_b32 s78, {R_CHX}
    L_CH_ROLE:""")
    a("s_setprio 3")
    a(f"""
    v_lshlrev_b32 v1, 2, v0
    v_mul_u32_u24 v2, 13, v0
    v_lshrrev_b32 v2, 8, v2
    v_mul_u32_u24 v3, 20, v2
    v_sub_u32 v3, v0, v3               ; c = lane%20
    v_cmp_gt_u32 vcc, 40, v0
    v_mov_b32 v7, {OOB:#x}
    s_mul_i32 s6, s46, 160
    v_mul_u32_u24 v4, 1280, v2
    v_lshlrev_b32 v5, 3, v3
    v_add3_u32 v5, v4, v5, s6
    v_cndmask_b32 v5, v7, v5, vcc
    s_and_b32 s6, s4, 3
    s_mul_i32 s6, s6, 320
    v_lshlrev_b32 v6, 4, v3
    v_add3_u32 v6, v4, v6, s6
    v_cndmask_b32 v6, v7, v6, vcc
    """)
    start_sync()
    srd(56, 8, 2560)
    srd(60, 26, 2560)
    a("buffer_load_dwordx4 v[20:23], v6, s[60:63], 0 offen")
    for b in range(2):
        for i in range(5):
            a(f"buffer_load_dword v{8+5*b+i}, v1, s[56:59], 0 offen offset:{1280*b+256*i}")
    a(f"""
    buffer_load_dwordx2 v[18:19], v5, s[56:59], 0 offen
    s_waitcnt vmcnt(11)
    """)
    stamp(1)
    for i in range(4): unpack(f"v{20+i}", f"v{24+2*i}", f"v{25+2*i}")
    for i in range(8): a(f"v_mul_f32 v{32+i}, {fl(-LOG2E)}, v{24+i}")
    for i in range(8): a(f"v_exp_f32 v{32+i}, v{32+i}")
    for i in range(8): a(f"v_add_f32 v{32+i}, 1.0, v{32+i}")
    for i in range(8): a(f"v_rcp_f32 v{40+i}, v{32+i}")
    for i in range(8): fdiv(f"v{48+i}", f"v{24+i}", f"v{40+i}", f"v{32+i}", "v56")
    for i in range(4): a(f"v_cvt_pk_bf16_f32 v{20+i}, v{48+2*i}, v{49+2*i}")
    a(f"""
    v_mul_u32_u24 v4, 320, v2
    v_lshlrev_b32 v7, 4, v3
    v_add_u32 v4, v4, v7
    v_add_u32 v4, {L_SC}, v4
    s_mov_b32 exec_hi, 0xff
    ds_write_b128 v4, v[20:23]
    s_mov_b32 exec_hi, -1
    s_waitcnt lgkmcnt(0)
    """)
    setflag(F_SCRDY)
    gettag()
    a("s_waitcnt vmcnt(0)")
    a("s_branch L_CH_LN")

    a.label("L_MSTAGE")
    tr_geom(100)
    a(f"""
    s_sub_u32 s72, s3, 10
    s_lshl_b32 s73, s72, 1
    v_xor_b32 v106, s73, v103
    v_lshlrev_b32 v106, 5, v106
    v_lshlrev_b32 v107, 7, v104
    v_add_u32 v107, v107, v105
    v_add_u32 v107, {L_MW}, v107
    v_xor_b32 v112, 32, v106
    v_add_u32 v112, v112, v107
    v_add_u32 v107, v106, v107
    v_and_b32 v108, 1, v0
    v_mul_u32_u24 v108, 320, v108
    v_lshlrev_b32 v109, 4, v100
    v_add_u32 v108, v108, v109
    v_add_u32 v108, {L_SC}, v108       ; A address
    ; store: 256*(g>>1) + 128u + 64*(g&1) + 4*(l&15)
    v_lshrrev_b32 v110, 1, v100
    v_lshlrev_b32 v110, 8, v110
    v_and_b32 v111, 1, v100
    v_lshlrev_b32 v111, 6, v111
    v_and_b32 v113, 15, v0
    v_lshlrev_b32 v113, 2, v113
    v_add3_u32 v110, v110, v111, v113
    s_lshl_b32 s6, s72, 7
    v_add_u32 v110, s6, v110
    """)
    spin(F_SCRDY, 1)
    for t in range(5): a(f"ds_read_b128 {rng(48+4*t,4)}, v108 offset:{64*t}")
    spin(F_MLAND, 1)
    for t in range(5):
        for hh in range(2):
            a(f"ds_read_b64_tr_b16 {rng(68+4*t+2*hh,2)}, v107 offset:{4096*t+512*hh}")
    for t in range(5):
        a(f"s_waitcnt lgkmcnt({2*(4-t) + 2*t})")
        c = '0' if t == 0 else 'v[96:99]'
        a(f"v_mfma_f32_16x16x32_bf16 v[96:99], {rng(48+4*t,4)}, {rng(68+4*t,4)}, {c}")
        for hh in range(2):
            a(f"ds_read_b64_tr_b16 {rng(120+4*t+2*hh,2)}, v112 offset:{4096*t+512*hh}")
    for t in range(5):
        a(f"s_waitcnt lgkmcnt({2*(4-t)})")
        c = '0' if t == 0 else 'v[140:143]'
        a(f"v_mfma_f32_16x16x32_bf16 v[140:143], {rng(48+4*t,4)}, {rng(120+4*t,4)}, {c}")
    a(f"""
    v_cndmask_b32 v96, v96, v140, s[48:49]
    v_cndmask_b32 v96, v96, v97, s[50:51]
    v_cndmask_b32 v96, v96, v141, s[52:53]
    """)
    tagit(['v96'])
    a(f"""
    buffer_store_dword v96, v110, s[36:39], s44 offen offset:{O_MP} sc1
    s_branch L_POST_M
    L_CH_LN:
    """)
    stamp(3)
    for b in range(2):
        for i in range(5): unpack(f"v{8+5*b+i}", f"v{24+10*b+2*i}", f"v{25+10*b+2*i}")
    for b in range(2):
        a(f"v_add_f32 v{44+b}, v{24+10*b}, v{25+10*b}")
        for i in range(2, 10): a(f"v_add_f32 v{44+b}, v{44+b}, v{24+10*b+i}")
    row16_sum(['v44', 'v45']); xrow16_sum(['v44', 'v45'], 50)
    for b in range(2): a(f"v_mul_f32 v{44+b}, {fl(1/640)}, v{44+b}")
    for b in range(2):
        for i in range(10): a(f"v_sub_f32 v{24+10*b+i}, v{24+10*b+i}, v{44+b}")
        a(f"v_mul_f32 v{46+b}, v{24+10*b}, v{24+10*b}")
        for i in range(1, 10): a(f"v_fma_f32 v{46+b}, v{24+10*b+i}, v{24+10*b+i}, v{46+b}")
    row16_sum(['v46', 'v47']); xrow16_sum(['v46', 'v47'], 50)
    for b in range(2): a(f"v_mul_f32 v{46+b}, {fl(1/640)}, v{46+b}")
    ln_finish('v44', 'v46', 50); ln_finish('v45', 'v47', 50)
    a(f"""
    v_cmp_eq_u32 vcc, 1, v2
    v_cndmask_b32 v44, v44, v45, vcc
    v_cndmask_b32 v46, v46, v47, vcc
    v_rcp_f32 v47, v46
    """)
    unpack('v18', 'v24', 'v25'); unpack('v19', 'v26', 'v27')
    for i in range(4): a(f"v_sub_f32 v{24+i}, v{24+i}, v44")
    bfround(vr(24, 4), 50)
    for i in range(4): fdiv(f"v{28+i}", f"v{24+i}", "v47", "v46", "v50")
    bfround(vr(28, 4), 50)
    a(f"""
    s_mov_b32 s68, -1
    s_mov_b32 s69, 0xff               ; lanes < 40
    s_mov_b32 s70, -1
    s_mov_b32 s71, 0xffff             ; lanes < 48
    s_mul_i32 s6, s46, 80
    v_lshlrev_b32 v4, 2, v3
    v_add_u32 v4, s6, v4               ; col
    v_lshlrev_b32 v5, 8, v2            ; 256*b
    v_mov_b32 v7, {OOB:#x}
    v_cmp_gt_u32 vcc, 40, v0
    """)
    for wh in range(2):
        a(f"""
        v_add_u32 v6, {640*wh}, v4
        v_lshrrev_b32 v15, 6, v6
        v_lshlrev_b32 v15, 16, v15
        v_and_b32 v6, 63, v6
        v_lshlrev_b32 v6, 2, v6
        v_add3_u32 v6, v6, v15, v5
        v_cndmask_b32 v{20+wh}, v7, v6, vcc
        """)
    a(f"""
    s_mov_b32 s84, 0
    s_mov_b32 s85, {REGION}
    s_mov_b32 s86, {2*REGION}
    s_mov_b32 s87, {3*REGION}
    """)
    tr_geom(100)
    QA = [156, 157, 158, 159]; QT = [96, 97, 98, 99]
    a(f"""
    v_mul_u32_u24 v106, 384, v104
    v_add_u32 v106, v106, v105
    v_add_u32 v106, {L_W}, v106
    v_lshlrev_b32 v107, 2, v100
    v_add_u32 v107, v107, v101
    v_mul_u32_u24 v107, 384, v107
    v_add_u32 v107, v107, v105
    v_add_u32 v107, {L_W + 64*384}, v107
    v_lshrrev_b32 v108, 1, v101
    v_and_b32 v109, 2, v100
    v_or_b32 v108, v108, v109          ; sigma'
    v_and_b32 v6, 1, v0
    v_mul_u32_u24 v6, 160, v6
    v_add_u32 v6, {L_H}, v6
    v_lshlrev_b32 v94, 4, v100
    v_add_u32 v94, v94, v6
    v_lshlrev_b32 v95, 3, v100
    v_add_u32 v95, v95, v6
    """)
    for q in range(4):
        a(f"""v_xor_b32 v{QA[q]}, {q}, v103
        v_lshlrev_b32 v{QA[q]}, 5, v{QA[q]}
        v_add_u32 v{QA[q]}, v{QA[q]}, v106
        v_xor_b32 v{QT[q]}, {q}, v108
        v_lshlrev_b32 v{QT[q]}, 5, v{QT[q]}
        v_add_u32 v{QT[q]}, v{QT[q]}, v107""")
    QB = [64, 74, 84, 116, 126, 136, 146]
    def qreads(n):
        G, q = n // 4, n % 4
        base = QB[n % 7]
        for t in range(2):
            for hh in range(2):
                a(f"ds_read_b64_tr_b16 {rng(base+4*t+2*hh,2)}, v{QA[q]} offset:{128*G + (32*t+4*hh)*384}")
        a(f"ds_read_b64_tr_b16 {rng(base+8,2)}, v{QT[q]} offset:{128*G}")
    spin(F_WQLAND, 1)
    stamp(4)
    for n in range(7):
        qreads(n)
        if n % 2 == 1: a("s_waitcnt lgkmcnt(5)")
    def mp_loads(base):
        for wh in range(2):
            for ks in range(4):
                a(f"buffer_load_dwordx4 {rng(base+16*wh+4*ks,4)}, v{20+wh}, s[36:39], s{84+ks} offen offset:{O_MP} sc1")
    def mp_consume(base):
        for wh in range(2):
            B = base + 16*wh; D = 100 + 8*wh
            for h in range(2):
                pkadd(D+2*h, B+2*h, B+4+2*h); pkadd(D+4+2*h, B+8+2*h, B+12+2*h)
            for h in range(2): pkadd(D+2*h, D+2*h, D+4+2*h)
    assert not cfg.pipe
    if cfg.dm: a(f"s_sleep {cfg.dm}")
    CP = [64, 66, 72, 76, 80, 82, 92, 98]
    if cfg.sel:
        poll_sel([(f"buffer_load_dwordx4 {rng(32+16*wh+4*ks,4)}, v{20+wh}, s[36:39], s{84+ks} offen offset:{O_MP} sc1", f"v{32+16*wh+4*ks+3}", 's[68:69]')
                  for wh in range(2) for ks in range(4)], itstamp=30, pairs=[64, 66, 72, 76, 80, 82, 90, 92])
        mp_consume(32)
    else:
        poll2(mp_loads, 8, 32, 64, lambda b: pick(vr(b, 32), 4), mp_consume, itstamp=30, space=cfg.sp_m, mask='s[68:69]')
    stamp(5)
    bfround(vr(100, 4), 22); bfround(vr(108, 4), 22)
    for i in range(4): a(f"v_add_f32 v{108+i}, 1.0, v{108+i}")
    bfround(vr(108, 4), 22)
    for i in range(4): a(f"v_mul_f32 v{28+i}, v{28+i}, v{108+i}")
    bfround(vr(28, 4), 22)
    for i in range(4): a(f"v_add_f32 v{28+i}, v{28+i}, v{100+i}")
    a(f"""
    v_cvt_pk_bf16_f32 v24, v28, v29
    v_cvt_pk_bf16_f32 v25, v30, v31
    v_mul_u32_u24 v4, 160, v2
    v_lshlrev_b32 v5, 3, v3
    v_add_u32 v4, v4, v5
    v_add_u32 v4, {L_H}, v4
    s_mov_b32 exec_hi, 0xff
    ds_write_b64 v4, v[24:25]
    s_mov_b32 exec_hi, -1
    s_waitcnt lgkmcnt(0)
    """)
    stamp(6)
    a("""s_waitcnt lgkmcnt(0)
    ds_read_b128 v[8:11], v94
    ds_read_b128 v[12:15], v94 offset:64
    ds_read_b64 v[16:17], v95 offset:128""")
    spin(F_FAST, 1)
    a("s_mov_b32 s75, s97")
    for n in range(12):
        G, q = n // 4, n % 4
        base = QB[n % 7]
        if n >= 7: a(f"s_waitcnt lgkmcnt({min(10, 5*(11 - n))})")
        a(f"v_mfma_f32_16x16x32_bf16 {rng(32+4*q,4)}, v[8:11], {rng(base,4)}, 0")
        a(f"v_mfma_f32_16x16x16_bf16 {rng(48+4*q,4)}, v[16:17], {rng(base+8,2)}, 0")
        a(f"v_mfma_f32_16x16x32_bf16 {rng(32+4*q,4)}, v[12:15], {rng(base+4,4)}, {rng(32+4*q,4)}")
        if n + 7 < 12:
            if n >= 2: a("s_waitcnt lgkmcnt(10)")
            qreads(n + 7)
        if q == 3:
            for b in range(2):
                a(f"""v_cndmask_b32 v{18+b}, v{32+b}, v{36+b}, s[48:49]
                v_cndmask_b32 v{24+b}, v{48+b}, v{52+b}, s[48:49]
                v_cndmask_b32 v{18+b}, v{18+b}, v{40+b}, s[50:51]
                v_cndmask_b32 v{24+b}, v{24+b}, v{56+b}, s[50:51]
                v_cndmask_b32 v{18+b}, v{18+b}, v{44+b}, s[52:53]
                v_cndmask_b32 v{24+b}, v{24+b}, v{60+b}, s[52:53]
                v_add_f32 v{18+b}, v{18+b}, v{24+b}""")
            tagit(['v18', 'v19'])
            F = a.new('QF'); D = a.new('QD')
            if cfg.fast:
                a(f"""
                s_cmp_eq_u32 s75, 2
                s_cbranch_scc1 {F}
                buffer_store_dword v18, v1, s[36:39], s44 offen offset:{O_QP+256*G} sc1
                buffer_store_dword v19, v1, s[36:39], s44 offen offset:{O_QP+768+256*G} sc1
                s_branch {D}
                {F}:
                buffer_store_dword v18, v1, s[36:39], s44 offen offset:{O_QP+256*G}
                buffer_store_dword v19, v1, s[36:39], s44 offen offset:{O_QP+768+256*G}
                {D}:
                """)
            else:
                a(f"""
                buffer_store_dword v18, v1, s[36:39], s44 offen offset:{O_QP+256*G} sc1
                buffer_store_dword v19, v1, s[36:39], s44 offen offset:{O_QP+768+256*G} sc1
                """)
    setflag(F_QS, 3)
    stamp(7)
    a(f"""
    s_lshl_b32 s6, s40, 6
    s_add_u32 s6, s6, s4
    s_lshl_b32 s84, s6, 13
    s_mul_i32 s6, s45, 768
    s_add_u32 s84, s84, s6
    v_lshlrev_b32 v4, 4, v0
    v_mov_b32 v7, {OOB:#x}
    v_cmp_gt_u32 vcc, 48, v0
    v_cndmask_b32 v4, v7, v4, vcc
    """)
    for i in range(1, 8): a(f"s_add_u32 s{84+i}, s{84+i-1}, {8*REGION}")
    def qp_loads(base):
        for i in range(8):
            a(f"buffer_load_dwordx4 {rng(base+4*i,4)}, v4, s[36:39], s{84+i} offen offset:{O_QP} sc1")
    def qp_consume(base):
        for h in range(2):
            for i in range(4): pkadd(8+4*i+2*h, base+8*i+2*h, base+8*i+4+2*h)
        for h in range(2):
            pkadd(8+2*h, 8+2*h, 12+2*h); pkadd(16+2*h, 16+2*h, 20+2*h)
        for h in range(2): pkadd(32 - 24 + 2*h, 8+2*h, 16+2*h)
    if cfg.dq: a(f"s_sleep {cfg.dq}")
    if cfg.sel:
        poll_sel([(f"buffer_load_dwordx4 {rng(96+4*i,4)}, v4, s[36:39], s{84+i} offen offset:{O_QP} sc1", f"v{96+4*i+3}", 's[70:71]') for i in range(8)],
                 itstamp=31, pairs=[56, 58, 60, 62, 64, 66, 72, 76])
        qp_consume(96)
    else:
        poll2(qp_loads, 8, 96, 128, lambda b: pick(vr(b, 32), 4), qp_consume, itstamp=31, space=cfg.sp_q, mask='s[70:71]')
    stamp(9)
    a(f"""
    v_cvt_pk_bf16_f32 v24, v8, v9
    v_cvt_pk_bf16_f32 v25, v10, v11
    v_lshlrev_b32 v4, 3, v0
    v_add_u32 v4, {L_Q}, v4
    s_mov_b32 exec_hi, 0xffff
    ds_write_b64 v4, v[24:25]
    s_mov_b32 exec_hi, -1
    s_waitcnt lgkmcnt(0)
    """)
    setflag(F_QRDY)
    spin(F_SCNT, 8)
    stamp(10)
    a(f"""
    v_lshlrev_b32 v4, 4, v0
    v_add_u32 v4, {L_S}, v4
    ds_read_b128 v[32:35], v4
    s_waitcnt lgkmcnt(0)
    v_max3_f32 v36, v32, v33, v34
    v_max_f32 v36, v36, v35
    """)
    row16_sum(['v36'], 'v_max_f32'); xrow16_sum(['v36'], 50, 'v_max_f32')
    a(f"v_mul_f32 v36, {fl(LOG2E)}, v36")
    a(f"s_mov_b32 s6, {fl(LOG2E)}")
    for i in range(4): a(f"v_fma_f32 v{32+i}, v{32+i}, s6, -v36")
    for i in range(4): a(f"v_exp_f32 v{32+i}, v{32+i}")
    a(f"""
    v_add_f32 v37, v32, v33
    v_add_f32 v38, v34, v35
    v_cvt_pk_bf16_f32 v24, v32, v33
    v_cvt_pk_bf16_f32 v25, v34, v35
    v_add_f32 v37, v37, v38
    v_lshlrev_b32 v4, 3, v0
    v_add_u32 v4, {L_P}, v4
    ds_write_b64 v4, v[24:25]
    """)
    spin(F_FAST, 1)
    a("s_mov_b32 s75, s97")
    setflag(F_PRDY)
    a(f"ds_read_b32 v38, {VF} offset:{F_EPOCH}")
    a("v_mov_b32 v39, 0")
    row16_sum(['v37']); xrow16_sum(['v37'], 50)
    a(f"""
    s_waitcnt lgkmcnt(0)
    v_mov_b32 v7, {OOB:#x}
    v_cmp_eq_u32 vcc, 0, v0
    v_cndmask_b32 v4, v7, 0, vcc
    """)
    a("s_waitcnt vmcnt(0)")
    pub_local(f"buffer_store_dwordx4 v[36:39], v4, s[36:39], s44 offen offset:{O_ML}")
    stamp(11)
    a("s_branch L_PV")

    a.label("L_POST")
    a("s_setprio 3")
    a("s_sub_u32 s54, s3, 10")
    for r in range(9, 30): a(f"v_mov_b32 v{r}, {OOB:#x}")
    start_sync()
    a(f"""
    s_cmp_eq_u32 s54, 0
    s_cbranch_scc0 L_POST_W11
    s_mov_b32 s78, {R_P0}
    s_cmp_lt_u32 s5, 30
    s_cbranch_scc1 L_POST_R0
    s_mov_b32 s78, {R_P0X}
    L_POST_R0:
    v_mov_b32 v2, {EPOCH_OFF}
    buffer_load_dword v47, v2, s[36:39], 0 offen sc1
    s_getreg_b32 s76, hwreg(HW_REG_XCC_ID)
    s_and_b32 s76, s76, 15
    s_waitcnt vmcnt(0)
    v_add_u32 v47, 1, v47
    v_and_b32 v3, 0xff, v47
    v_or_b32 v4, 0x100, v3
    ds_write_b32 {VF}, v47 offset:{F_EPOCH}
    ds_write_b32 {VF}, v4 offset:{F_TAG}
    s_lshl_b32 s6, s76, 8
    v_or_b32 v3, s6, v3                ; (xcc<<8)|tag
    v_mov_b32 v4, {OOB:#x}
    v_cmp_eq_u32 vcc, 0, v0
    v_cndmask_b32 v4, v4, 0, vcc
    buffer_store_dword v3, v4, s[36:39], s44 offen offset:{O_XC} sc1
    s_branch L_POST_A
    L_POST_W11:
    s_mov_b32 s78, {R_P1}
    s_cmp_lt_u32 s5, 30
    s_cbranch_scc1 L_POST_R1
    s_mov_b32 s78, {R_P1X}
    L_POST_R1:
    """)
    if not cfg.pf_top:
        a(f"""
        s_mov_b32 s58, L_CODE_END-{KNAME}
        s_mov_b32 s59, 0x00020000
        s_lshl_b32 s6, s5, 10
        v_lshlrev_b32 v2, 4, v0
        buffer_load_dwordx4 v[152:155], v2, s[56:59], s6 offen
        """)
    srd(56, 16, 7864320); srd(60, 20, 1966080); srd(64, 22, 1966080); srd(68, 24, 1966080)
    a(f"""
    s_mul_i32 s6, s4, 768
    s_lshl_b32 s7, s42, 8
    s_add_u32 s6, s6, s7
    s_mul_i32 s6, s6, 1280
    v_lshlrev_b32 v3, 16, v0
    v_mov_b32 v4, {OOB:#x}
    v_cmp_gt_u32 vcc, 5, v0
    v_cndmask_b32 v3, v4, v3, vcc
    buffer_load_dword v156, v3, s[56:59], s6 offen
    s_mul_i32 s6, s43, {64*3072}
    buffer_load_dword v157, v3, s[60:63], s6 offen
    buffer_load_dword v158, v3, s[64:67], s6 offen
    s_mul_i32 s7, s4, 3
    s_add_u32 s7, s7, s42
    s_mul_i32 s6, s7, {64*1280}
    buffer_load_dword v159, v3, s[68:71], s6 offen
    L_POST_A:
    """)
    stamp(1)
    gettag()
    a(f"""
    s_cmp_eq_u32 s78, {R_P0X}
    s_cbranch_scc1 L_POST_XC
    s_cmp_eq_u32 s78, {R_P1X}
    s_cbranch_scc1 L_POST_Q
    """)
    a("s_branch L_MSTAGE")
    a.label("L_POST_M")
    a(f"""
    s_cmp_eq_u32 s78, {R_P0}
    s_cbranch_scc0 L_POST_ADDR
    L_POST_XC:
    """)
    a(f"""
    v_lshlrev_b32 v48, 16, v0
    s_lshl_b32 s6, s4, 13
    v_add_u32 v48, s6, v48
    v_mov_b32 v49, {OOB:#x}
    v_cmp_gt_u32 vcc, 32, v0
    v_cndmask_b32 v48, v49, v48, vcc
    s_mov_b32 s76, -1
    s_mov_b32 s77, 0
    """)
    def xc_loads():
        a(f"buffer_load_dword v50, v48, s[36:39], 0 offen offset:{O_XC} sc1")
    poll(xc_loads, ['v50'], mask='s[76:77]')
    a(f"""
    s_getreg_b32 s6, hwreg(HW_REG_XCC_ID)
    s_and_b32 s6, s6, 15
    v_lshrrev_b32 v50, 8, v50
    v_cmp_ne_u32 vcc, s6, v50
    s_and_b64 vcc, vcc, s[76:77]
    s_cselect_b32 s6, 1, 2
    v_mov_b32 {VT}, s6
    ds_write_b32 {VF}, {VT} offset:{F_FAST}
    """)
    stamp(4)
    a(f"""
    s_cmp_eq_u32 s78, {R_P0X}
    s_cbranch_scc1 L_POST_Q
    L_POST_ADDR:
    """)
    a(f"""
    v_lshrrev_b32 v1, 4, v0            ; g
    v_and_b32 v2, 15, v0               ; c
    v_lshlrev_b32 v3, 4, v2            ; 16c
    s_lshl_b32 s55, s54, 8             ; 256*b
    v_lshl_add_u32 v4, v2, 2, v1       ; column 4c+g
    v_lshlrev_b32 v4, 1, v4
    s_lshl_b32 s6, s54, 7
    v_add_u32 v9, s6, v4
    v_lshlrev_b32 v10, 1, v0
    v_add_u32 v10, s6, v10
    v_add_u32 v10, {L_H2}, v10
    s_add_u32 s6, s54, 30
    s_lshl_b32 s6, s6, 3
    s_add_u32 s6, s6, s4
    s_lshl_b32 s6, s6, 13
    s_lshl_b32 s7, s43, 8
    s_add_u32 s6, s6, s7
    v_lshlrev_b32 v22, 2, v0
    v_add_u32 v22, s6, v22
    s_mul_i32 s6, s42, 80
    s_add_u32 s6, s6, s4
    s_lshl_b32 s6, s6, 13
    s_add_u32 s7, s6, s55
    v_mov_b32 v7, {OOB:#x}
    """)
    for i in range(3):
        a(f"""
        v_add_u32 v5, {4*i}, v1
        v_cmp_gt_u32 vcc, 10, v5
        v_lshlrev_b32 v5, 16, v5
        v_add3_u32 v5, v5, v3, s7
        v_cndmask_b32 v{23+i}, v7, v5, vcc
        """)
    a(f"""
    s_lshl_b32 s6, s42, 8
    v_lshlrev_b32 v5, 2, v0
    v_add_u32 v5, s6, v5               ; rho
    v_mul_u32_u24 v6, 342, v5
    v_lshrrev_b32 v6, 16, v6           ; rho/192
    v_mul_u32_u24 v7, 192, v6
    v_sub_u32 v5, v5, v7
    v_lshlrev_b32 v5, 2, v5
    v_lshlrev_b32 v6, 3, v6
    s_lshl_b32 s6, s54, 2
    v_add_u32 v6, s6, v6
    v_lshlrev_b32 v6, 3, v6
    v_add_u32 v6, s4, v6
    v_lshlrev_b32 v26, 13, v6
    v_add_u32 v27, v26, v5             ; O address
    v_lshlrev_b32 v28, 3, v0
    s_lshl_b32 s6, s54, 9
    s_add_u32 s6, s6, {L_AO}
    v_add_u32 v28, s6, v28
    s_mov_b32 s88, {O_GP}
    s_mov_b32 s90, -1
    s_mov_b32 s91, 0
    """)
    if not cfg.hub:
        for qi, cb0 in enumerate((20, 30, 40, 50)):
            odd = 1 if cb0 >= 30 else 0
            a(f"""
            s_add_u32 s6, s43, {cb0 - 30*odd}
            s_lshl_b32 s6, s6, 3
            s_add_u32 s6, s6, {4*odd}
            s_lshl_b32 s6, s6, 13
            s_add_u32 s6, s6, s55
            v_lshlrev_b32 v5, 13, v1
            v_add3_u32 v{12+qi}, v5, v3, s6
            """)
        for i in range(6):
            a(f"""
            v_add_u32 v5, {4*i}, v1
            v_mul_u32_u24 v6, 86, v5
            v_lshrrev_b32 v6, 8, v6
            v_mul_u32_u24 v7, 3, v6
            v_sub_u32 v5, v5, v7
            v_mul_u32_u24 v5, 10, v5
            v_add_u32 v5, s43, v5
            v_lshlrev_b32 v5, 3, v5
            v_add_u32 v5, v5, v6
            v_lshlrev_b32 v5, 13, v5
            v_add3_u32 v{16+i}, v5, v3, s55
            """)
        a(f"""
        s_mul_i32 s6, s42, 80
        s_add_u32 s6, s6, s4
        s_lshl_b32 s6, s6, 13
        s_lshl_b32 s7, s54, 4
        s_add_u32 s6, s6, s7
        v_lshlrev_b32 v5, 16, v2
        v_add_u32 v5, s6, v5
        v_mov_b32 v7, {OOB:#x}
        v_cmp_gt_u32 vcc, 10, v2
        v_cndmask_b32 v22, v7, v5, vcc
        v_mov_b32 v5, s7
        v_cmp_eq_u32 vcc, 0, v0
        v_cndmask_b32 v29, v7, v5, vcc
        v_lshl_add_u32 v4, v2, 2, v1
        v_lshlrev_b32 v4, 1, v4
        s_mul_i32 s6, s54, 1280
        s_lshl_b32 s7, s43, 7
        s_add_u32 s6, s6, s7
        v_add_u32 v11, s6, v4
        s_mov_b32 s92, 0x03ff03ff
        s_mov_b32 s93, 0x03ff03ff
        """)
    a(f"""
    ds_read_b32 v5, {VF} offset:{F_EPOCH}
    s_waitcnt lgkmcnt(0)
    v_readfirstlane_b32 s94, v5
    L_POST_Q:
    s_add_u32 s82, s54, 1
    s_branch L_VLOAD
    """)

    a.label("L_PV")
    tr_geom(100)
    a(f"""
    s_and_b32 s6, s3, 3
    v_xor_b32 v106, s6, v103
    v_lshlrev_b32 v106, 5, v106
    s_lshr_b32 s6, s3, 2
    s_lshl_b32 s6, s6, 7
    v_mul_u32_u24 v107, 384, v104
    v_add3_u32 v107, v107, v105, v106
    v_add_u32 v107, s6, v107
    v_add_u32 v108, 49152, v107
    v_lshlrev_b32 v109, 4, v100
    v_add_u32 v109, {L_P}, v109
    s_lshl_b32 s6, s3, 6
    v_lshlrev_b32 v110, 2, v0
    v_add_u32 v110, s6, v110
    v_mov_b32 v111, {OOB:#x}
    v_cmp_gt_u32 vcc, 16, v0
    v_cndmask_b32 v110, v111, v110, vcc
    """)
    if cfg.prea:
        spin(F_PRDY, 1, cfg.ksleep)
        a(f"ds_read_b64 v[164:165], {VF} offset:{F_TAG}")
        for t in range(8): a(f"ds_read_b128 {rng(64+4*t,4)}, v109 offset:{64*t}")
    a(f"""
    s_cmp_eq_u32 s79, 11
    s_cbranch_scc0 L_PV_WA
    s_waitcnt vmcnt(11)
    s_branch L_PV_W1
    L_PV_WA:
    s_cmp_eq_u32 s79, 10
    s_cbranch_scc0 L_PV_W0
    s_waitcnt vmcnt(10)
    s_branch L_PV_W1
    L_PV_W0:
    s_cmp_eq_u32 s79, 0
    s_cbranch_scc0 L_PV_W1
    s_waitcnt vmcnt(0)
    L_PV_W1:
    s_waitcnt lgkmcnt(0)
    """)
    stamp(8)
    if cfg.prea:
        a(f"""v_readfirstlane_b32 s97, v164
        v_readfirstlane_b32 s75, v165
        v_and_b32 {VTAG}, 0xff, v164
        s_and_b32 s95, s97, 0xff""")
    a("s_barrier")
    stamp(12)
    bufs = [48, 52, 56, 60]
    if cfg.prea:
        vb = [48, 52, 56, 60, 112, 116, 120]
        def vread(t):
            ad = 'v107' if t < 4 else 'v108'
            tt = t % 4
            base = vb[t % 7]
            a(f"ds_read_b64_tr_b16 {rng(base,2)}, {ad} offset:{12288*tt}")
            a(f"ds_read_b64_tr_b16 {rng(base+2,2)}, {ad} offset:{12288*tt+1536}")
        for t in range(7): vread(t)
        for t in range(8):
            rem = min(7, t + 6) - t
            a(f"s_waitcnt lgkmcnt({2*rem})")
            c = '0' if t == 0 else 'v[96:99]'
            a(f"v_mfma_f32_16x16x32_bf16 v[96:99], {rng(64+4*t,4)}, {rng(vb[t%7],4)}, {c}")
            if t + 7 < 8: vread(t + 7)
    else:
        a(f"ds_read_b64 v[164:165], {VF} offset:{F_TAG}")
        def vread(t):
            ad = 'v107' if t < 4 else 'v108'
            tt = t % 4
            base = bufs[t % 4]
            a(f"ds_read_b128 {rng(64+4*t,4)}, v109 offset:{64*t}")
            a(f"ds_read_b64_tr_b16 {rng(base,2)}, {ad} offset:{12288*tt}")
            a(f"ds_read_b64_tr_b16 {rng(base+2,2)}, {ad} offset:{12288*tt+1536}")
        for t in range(4): vread(t)
        for t in range(8):
            rem = min(7, t + 3) - t
            a(f"s_waitcnt lgkmcnt({3*rem})")
            c = '0' if t == 0 else 'v[96:99]'
            a(f"v_mfma_f32_16x16x32_bf16 v[96:99], {rng(64+4*t,4)}, {rng(bufs[t%4],4)}, {c}")
            if t + 4 < 8: vread(t + 4)
            if t == 1:
                a(f"""v_readfirstlane_b32 s97, v164
                v_readfirstlane_b32 s75, v165
                v_and_b32 {VTAG}, 0xff, v164
                s_and_b32 s95, s97, 0xff""")
    tagit(['v96'])
    pub_local(f"buffer_store_dword v96, v110, s[36:39], s44 offen offset:{O_OP}")
    stamp(13)
    a(f"""
    s_cmp_eq_u32 s78, {R_K}
    s_cbranch_scc1 L_K2
    s_cmp_eq_u32 s78, {R_P0}
    s_cbranch_scc1 L_POST2
    s_cmp_eq_u32 s78, {R_P1}
    s_cbranch_scc1 L_POST2
    """)
    if cfg.hub:
        a(f"""
        s_cmp_eq_u32 s78, {R_KX}
        s_cbranch_scc1 L_HUB
        s_cmp_eq_u32 s78, {R_LDX}
        s_cbranch_scc1 L_HUB
        s_cmp_eq_u32 s78, {R_CHX}
        s_cbranch_scc1 L_HUB
        """)
    a(f"""
    s_cmp_eq_u32 s78, {R_LD}
    s_cbranch_scc0 L_FIN
    s_waitcnt vmcnt(1)
    s_barrier
    s_branch L_FIN
    """)
    a.label("L_K2")
    a(f"""
    s_mul_i32 s88, s4, 3
    s_add_u32 s88, s88, s42            ; f
    s_movk_i32 s89, 0xc00
    s_cmp_eq_u32 s3, 6
    s_cselect_b32 s89, 1280, s89
    s_cselect_b32 s90, s88, s43
    s_cselect_b32 s91, s43, s88
    s_lshl_b32 s90, s90, 6
    s_mul_i32 s90, s90, s89
    s_lshl_b32 s91, s91, 7
    s_add_u32 s90, s90, s91            ; soffset
    s_cmp_eq_u32 s3, 4
    s_cselect_b32 s68, s20, s22
    s_cselect_b32 s69, s21, s23
    s_cmp_eq_u32 s3, 6
    s_cselect_b32 s68, s24, s68
    s_cselect_b32 s69, s25, s69
    s_mov_b32 s70, 1966080
    s_mov_b32 s71, 0x00020000
    s_sub_u32 s91, s3, 4
    s_lshl_b32 s91, s91, 13
    s_add_u32 s91, s91, {L_MW}
    """)
    off128('v72', 'v73', 's89', 1)
    a(f"""
    s_lshl_b32 s89, s89, 3             ; 8 rows
    s_and_b32 s6, s3, 1
    s_lshl_b32 s7, s6, 1
    v_xor_b32 v106, s7, v103
    v_lshlrev_b32 v106, 5, v106
    v_lshlrev_b32 v107, 7, v104
    v_add_u32 v107, v107, v105             ; (8g+r)*128 + 8c
    v_xor_b32 v105, 32, v106
    v_add_u32 v105, v105, v107
    v_add_u32 v106, v106, v107
    s_and_b32 s7, s3, 3
    v_xor_b32 v109, s7, v103
    v_lshlrev_b32 v109, 5, v109
    v_add_u32 v107, v109, v107
    v_and_b32 v108, 1, v0
    v_lshrrev_b32 v110, 1, v100
    v_lshlrev_b32 v110, 8, v110
    v_and_b32 v111, 1, v100
    v_lshlrev_b32 v111, 6, v111
    v_and_b32 v113, 15, v0
    v_lshlrev_b32 v113, 2, v113
    v_add3_u32 v110, v110, v111, v113
    s_lshl_b32 s6, s6, 7
    v_add_u32 v110, s6, v110
    s_lshl_b32 s7, s7, 6
    s_lshr_b32 s6, s3, 2
    s_lshl_b32 s6, s6, 9
    s_add_u32 s7, s7, s6
    v_lshlrev_b32 v111, 8, v100
    v_add3_u32 v115, v111, v113, s7
    v_mov_b32 v111, {OOB:#x}
    v_cmp_gt_u32 vcc, 32, v0
    v_cndmask_b32 v115, v111, v115, vcc
    v_lshlrev_b32 v113, 4, v100            ; 16g
    v_lshlrev_b32 v112, 9, v108
    v_add_u32 v112, v112, v113
    v_add_u32 v112, {L_AO}, v112
    v_add_u32 v114, {L_W}, v106
    v_add_u32 v116, {L_W}, v105
    s_waitcnt vmcnt(1)
    s_barrier
    """)
    stamp(14)
    a(f"""
    s_cmp_gt_u32 s3, 1
    s_cbranch_scc1 L_K_NOWO
    """)
    def wread(t, base, ad):
        a(f"ds_read_b64_tr_b16 {rng(base,2)}, {ad} offset:{4096*t}")
        a(f"ds_read_b64_tr_b16 {rng(base+2,2)}, {ad} offset:{4096*t+512}")
    bA = [48, 52, 56]; bB = [120, 124, 128]
    def woread(t):
        a(f"ds_read_b128 {rng(64+4*t,4)}, v112 offset:{64*t}")
        wread(t, bA[t % 3], 'v114'); wread(t, bB[t % 3], 'v116')
    for t in range(3): woread(t)
    for t in range(8):
        rem = min(7, t + 2) - t
        a(f"s_waitcnt lgkmcnt({5*rem})")
        c0 = '0' if t == 0 else 'v[96:99]'; c1 = '0' if t == 0 else 'v[140:143]'
        a(f"v_mfma_f32_16x16x32_bf16 v[96:99], {rng(64+4*t,4)}, {rng(bA[t%3],4)}, {c0}")
        a(f"v_mfma_f32_16x16x32_bf16 v[140:143], {rng(64+4*t,4)}, {rng(bB[t%3],4)}, {c1}")
        if t + 3 < 8: woread(t + 3)
    a(f"""
    v_cndmask_b32 v96, v96, v140, s[48:49]
    v_cndmask_b32 v96, v96, v97, s[50:51]
    v_cndmask_b32 v96, v96, v141, s[52:53]
    v_bfi_b32 v96, {VM8}, {VTAG}, v96
    buffer_store_dword v96, v110, s[36:39], s44 offen offset:{O_P1} sc1
    """)
    if cfg.ffn_ack:
        a("s_waitcnt vmcnt(0)")
        addflag(F_P1ACK)
    a(f"""
    s_branch L_K_GU
    L_K_NOWO:
    s_cmp_lt_u32 s3, 4
    s_cbranch_scc1 L_K_GU
    s_cmp_eq_u32 s3, 7
    s_cbranch_scc1 L_K_GU
    """)
    if cfg.ffn_ack: spin(F_P1ACK, 2)
    if cfg.dffn: a(f"s_sleep {cfg.dffn}")
    for i in range(8):
        a(f"""s_add_u32 m0, s91, {1024*i}
        s_nop 0
        buffer_load_dwordx4 v{72 + (i & 1)}, s[68:71], s90 offen {NT} lds""")
        if i < 7: a("s_add_u32 s90, s90, s89")
    a("s_waitcnt vmcnt(0)")
    a.label("L_K_GU")
    stamp(15)
    a(f"""
    s_lshr_b32 s6, s3, 2
    s_lshl_b32 s7, s6, 13
    s_add_u32 s7, s7, {L_MW}
    v_add_u32 v114, s7, v107
    v_lshlrev_b32 v112, 7, v108
    v_add_u32 v112, v112, v113
    v_add_u32 v117, {L_ACT}, v112
    v_add_u32 v112, {L_H2}, v112
    s_add_u32 s6, s44, {O_GP}
    s_barrier
    """)
    stamp(16)
    a(f"""
    ds_read_b128 v[64:67], v112
    ds_read_b128 v[68:71], v112 offset:64
    """)
    wread(0, 48, 'v114'); wread(1, 52, 'v114')
    a(f"""
    s_waitcnt lgkmcnt(2)
    v_mfma_f32_16x16x32_bf16 v[96:99], v[64:67], v[48:51], 0
    s_waitcnt lgkmcnt(0)
    v_mfma_f32_16x16x32_bf16 v[96:99], v[68:71], v[52:55], v[96:99]
    v_cndmask_b32 v96, v96, v97, s[48:49]
    v_bfi_b32 v96, {VM8}, {VTAG}, v96
    """)
    pub_local("buffer_store_dword v96, v115, s[36:39], s6 offen")
    stamp(17)
    a(f"""
    s_cmp_gt_u32 s3, 1
    s_cbranch_scc1 L_FIN
    v_add_u32 v114, {L_MW + 16384}, v106
    v_add_u32 v116, {L_MW + 16384}, v105
    """)
    wread(0, 48, 'v114'); wread(1, 52, 'v114'); wread(0, 120, 'v116'); wread(1, 124, 'v116')
    a("s_barrier")
    stamp(18)
    a(f"""
    ds_read_b128 v[64:67], v117
    ds_read_b128 v[68:71], v117 offset:64
    s_waitcnt lgkmcnt(1)
    v_mfma_f32_16x16x32_bf16 v[96:99], v[64:67], v[48:51], 0
    v_mfma_f32_16x16x32_bf16 v[140:143], v[64:67], v[120:123], 0
    s_waitcnt lgkmcnt(0)
    v_mfma_f32_16x16x32_bf16 v[96:99], v[68:71], v[52:55], v[96:99]
    v_mfma_f32_16x16x32_bf16 v[140:143], v[68:71], v[124:127], v[140:143]
    v_cndmask_b32 v96, v96, v140, s[48:49]
    v_cndmask_b32 v96, v96, v97, s[50:51]
    v_cndmask_b32 v96, v96, v141, s[52:53]
    v_bfi_b32 v96, {VM8}, {VTAG}, v96
    buffer_store_dword v96, v110, s[36:39], s44 offen offset:{O_P2} sc1
    """)
    stamp(19)
    a("s_branch L_FIN")

    a.label("L_POST2")
    a(f"""
    s_mov_b32 s84, 0
    s_mov_b32 s85, {8*REGION}
    s_mov_b32 s86, {16*REGION}
    s_mov_b32 s87, {24*REGION}
    """)
    def a_loads(base):
        for s in range(4):
            a(f"buffer_load_dwordx4 {rng(base+4*s,4)}, v27, s[36:39], s{84+s} offen offset:{O_OP} sc1")
        for s in range(4):
            a(f"buffer_load_dwordx2 {rng(base+16+2*s,2)}, v26, s[36:39], s{84+s} offen offset:{O_ML} sc1")
    def a_consume(B):
        M = B + 16
        a(f"""
        v_max3_f32 v48, v{M}, v{M+4}, v{M+8}
        v_max_f32 v48, v48, v{M+12}
        """)
        for s in range(4): a(f"v_sub_f32 v{50+s}, v{M+4*s}, v48")
        for s in range(4): a(f"v_exp_f32 v{50+s}, v{50+s}")
        a(f"""
        v_mul_f32 v49, v50, v{M+1}
        v_mul_f32 v56, v50, v{B}
        v_mul_f32 v57, v50, v{B+1}
        v_fma_f32 v49, v51, v{M+5}, v49
        v_mul_f32 v58, v50, v{B+2}
        v_mul_f32 v59, v50, v{B+3}
        v_fma_f32 v49, v52, v{M+9}, v49
        """)
        for i in range(4): a(f"v_fma_f32 v{56+i}, v51, v{B+4+i}, v{56+i}")
        a(f"v_fma_f32 v49, v53, v{M+13}, v49")
        for i in range(4): a(f"v_fma_f32 v{56+i}, v52, v{B+8+i}, v{56+i}")
        a("v_rcp_f32 v49, v49")
        for i in range(4): a(f"v_fma_f32 v{56+i}, v53, v{B+12+i}, v{56+i}")
    assert cfg.sel
    if cfg.sel:
        poll_sel([(f"buffer_load_dwordx4 {rng(64+4*s_,4)}, v27, s[36:39], s{84+s_} offen offset:{O_OP} sc1", f"v{64+4*s_+3}", None) for s_ in range(4)] +
                 [(f"buffer_load_dwordx4 {rng(80+4*s_,4)}, v26, s[36:39], s{84+s_} offen offset:{O_ML} sc1", ('full', f"v{80+4*s_+2}"), None) for s_ in range(4)], itstamp=31)
        a_consume(64)
    else:
        poll2(a_loads, 8, 64, 88, lambda b: pick(vr(b, 16), 4) + pick(vr(b+16, 8), 2), a_consume, itstamp=31, space=cfg.sp_l)
    stamp(14)
    for i in range(4): a(f"v_mul_f32 v{56+i}, v{56+i}, v49")
    a(f"""
    v_cvt_pk_bf16_f32 v60, v56, v57
    v_cvt_pk_bf16_f32 v61, v58, v59
    ds_write_b64 v28, v[60:61]
    s_waitcnt lgkmcnt(0)
    s_barrier
    """)
    stamp(15)
    PA, PB = 112, 136
    def p_consume(base):
        for h in range(2):
            pkadd(64+2*h, base+2*h, base+4+2*h)
            pkadd(68+2*h, base+8+2*h, base+12+2*h)
            pkadd(72+2*h, base+16+2*h, base+20+2*h)
        for h in range(2): pkadd(64+2*h, 64+2*h, 68+2*h)
        for h in range(2): pkadd(64+2*h, 64+2*h, 72+2*h)
        transred(64)
    def p_list(off): return [(f"buffer_load_dwordx4 {rng(PA+4*i,4)}, v{16+i}, s[36:39], 0 offen offset:{off} sc1", f"v{PA+4*i+3}", None) for i in range(6)]
    def mod_list(): return [(f"buffer_load_dwordx4 {rng(48+4*qi,4)}, v{12+qi}, s[36:39], 0 offen offset:{O_MP} sc1", f"v{48+4*qi+3}", None) for qi in range(4)]
    def mod_consume():
        for qi in range(4): transred(48 + 4*qi)
        a("""v_mov_b32 v32, v48
        v_mov_b32 v33, v52
        v_mov_b32 v34, v56
        v_mov_b32 v35, v60""")
        bfround(vr(32, 4), 40)
        a("v_add_f32 v34, 1.0, v34")
        bfround(['v34'], 40)
        a("v_lshlrev_b32 v30, 16, v8")
    def x1_code():
        a(f"""
        v_cvt_pk_bf16_f32 v64, v64, v64
        v_lshlrev_b32 v64, 16, v64
        v_mul_f32 v64, v32, v64
        v_cvt_pk_bf16_f32 v64, v64, v64
        v_lshlrev_b32 v64, 16, v64
        v_add_f32 v30, v30, v64
        v_cvt_pk_bf16_f32 v30, v30, v30
        v_lshlrev_b32 v30, 16, v30         ; x1
        v_mul_f32 v65, v30, v30
        v_mov_b32 v64, v30
        """)
        row16_sum(['v64', 'v65'])
        a(f"""
        v_permlane32_swap_b32 v64, v65
        v_add_f32 v64, v64, v65
        v_mov_b32 v65, v64
        v_permlane16_swap_b32 v64, v65
        v_add_f32 v64, v64, v65
        """)
    def ln2_code():
        row16_sum(['v68', 'v69'])
        a(f"""
        v_mul_f32 v68, {fl(1/640)}, v68
        v_mul_f32 v69, {fl(1/640)}, v69
        v_fma_f32 v69, -v68, v68, v69
        v_max_f32 v69, 0, v69
        """)
        ln_finish('v68', 'v69', 70)
        a(f"""
        v_rcp_f32 v71, v69
        v_sub_f32 v64, v30, v68
        v_cvt_pk_bf16_f32 v64, v64, v64
        v_lshlrev_b32 v64, 16, v64
        """)
        fdiv('v72', 'v64', 'v71', 'v69', 'v70')
        a(f"""
        v_cvt_pk_bf16_f32 v72, v72, v72
        v_lshlrev_b32 v72, 16, v72
        v_mul_f32 v72, v72, v34
        v_cvt_pk_bf16_f32 v72, v72, v72
        v_lshlrev_b32 v72, 16, v72
        v_add_f32 v72, v72, v33
        v_cvt_pk_bf16_f32 v72, v72, v72
        """)
    def final_code():
        a(f"""
        v_cvt_pk_bf16_f32 v64, v64, v64
        v_lshlrev_b32 v64, 16, v64
        v_mul_f32 v64, v35, v64
        v_cvt_pk_bf16_f32 v64, v64, v64
        v_lshlrev_b32 v64, 16, v64
        v_add_f32 v64, v30, v64
        v_cvt_pk_bf16_f32 v64, v64, v64
        buffer_store_short v64, v11, s[60:63], 0 offen
        """)
    if cfg.hub:
        def h2_loads():
            a(f"buffer_load_dword v64, v22, s[36:39], 0 offen offset:{O_H2} sc1")
        if cfg.dh: a(f"s_sleep {cfg.dh}")
        sv = cfg.poll_sleep; cfg.poll_sleep = 1
        poll(h2_loads, ['v64'], itstamp=33)
        cfg.poll_sleep = sv
        stamp(17)
        a(f"""
        v_lshrrev_b32 v64, 16, v64
        ds_write_b16 v10, v64
        s_waitcnt lgkmcnt(0)
        s_barrier
        """)
        stamp(18)
    else:
        srd(56, 8, 2560)
        srd(60, 30, 2560)
        a("""buffer_load_ushort v8, v11, s[56:59], 0 offen
        buffer_load_ushort v10, v11, s[60:63], 0 offen""")
        for t, _, _ in mod_list(): a(t)
        for t, _, _ in p_list(O_P1): a(t)
        MOK = a.new('MO'); MJ = a.new('MJ')
        a("s_waitcnt vmcnt(6)")
        for i, (t, r, m) in enumerate(mod_list()):
            a(f"v_cmp_ne_u32_sdwa s[{64+2*i}:{65+2*i}], {r}, s95 src0_sel:BYTE_0 src1_sel:BYTE_0")
        a(f"""s_or_b64 vcc, s[64:65], s[66:67]
        s_or_b64 vcc, vcc, s[68:69]
        s_or_b64 vcc, vcc, s[70:71]
        s_cbranch_scc0 {MOK}""")
        poll_sel(mod_list())
        a(f"s_branch {MJ}")
        a.label(MOK)
        for t, r, m in mod_list(): a(f"v_and_b32 {r}, 0xffffff00, {r}")
        a.label(MJ)
        mod_consume()
        stamp(21)
        poll_sel(p_list(O_P1), itstamp=32, pre=True)
        p_consume(PA)
        stamp(16)
        x1_code()
        a(f"""
        v_readlane_b32 s6, v64, 32
        v_mov_b32 v66, s94
        v_mov_b32 v67, 0
        v_mov_b32 v65, s6
        """)
        pub_local(f"buffer_store_dwordx4 v[64:67], v29, s[36:39], s44 offen offset:{O_ST}")
        poll_sel([(f"buffer_load_dwordx4 v[68:71], v22, s[36:39], 0 offen offset:{O_ST} sc1", ('full', 'v70'), 's[92:93]')], itstamp=33)
        stamp(17)
        ln2_code()
        a(f"""
        v_add_u32 v73, {L_H2}, v9
        ds_write_b16 v73, v72
        s_waitcnt lgkmcnt(0)
        s_barrier
        """)
        stamp(18)
    def gp_loads(base):
        for mat in range(2):
            for i in range(3):
                a(f"buffer_load_dwordx4 {rng(base+12*mat+4*i,4)}, v{23+i}, s[36:39], s88 offen offset:{512*mat} sc1")
    def gp_consume(base):
        for mat in range(2):
            B = base + 12*mat; D = 64 + 4*mat
            for h in range(2): pkadd(D+2*h, B+2*h, B+4+2*h)
            for h in range(2): pkadd(D+2*h, D+2*h, B+8+2*h)
    if cfg.dg: a(f"s_sleep {cfg.dg}")
    if cfg.sel:
        poll_sel([(f"buffer_load_dwordx4 {rng(80+12*mat+4*i,4)}, v{23+i}, s[36:39], s88 offen offset:{512*mat} sc1", f"v{80+12*mat+4*i+3}", 's[90:91]' if i == 2 else None)
                  for mat in range(2) for i in range(3)], itstamp=34)
        gp_consume(80)
    else:
        poll2(gp_loads, 6, 80, 112, lambda b: pick(vr(b, 8) + vr(b+12, 8), 4), gp_consume, itstamp=34, space=cfg.sp_l,
              extra=lambda b: (pick(vr(b+8, 4) + vr(b+20, 4), 4), 's[90:91]'))
    stamp(19)
    transred(64); transred(68)
    K0 = 0.7978845608028654; K1 = 0.044715
    a(f"""
    v_cvt_pk_bf16_f32 v72, v64, v68
    v_lshlrev_b32 v64, 16, v72         ; gate
    v_and_b32 v68, 0xffff0000, v72     ; up
    v_mul_f32 v72, v64, v64
    v_mul_f32 v72, {fl(K1)}, v72
    v_add_f32 v72, 1.0, v72
    v_mul_f32 v72, v72, v64
    v_mul_f32 v72, {fl(-2*K0*LOG2E)}, v72
    v_exp_f32 v72, v72
    v_add_f32 v72, 1.0, v72
    v_rcp_f32 v72, v72
    v_mul_f32 v64, v64, v72
    v_cvt_pk_bf16_f32 v64, v64, v64
    v_lshlrev_b32 v64, 16, v64
    v_mul_f32 v64, v64, v68
    v_cvt_pk_bf16_f32 v64, v64, v64
    v_add_u32 v73, {L_ACT}, v9
    ds_write_b16 v73, v64
    s_waitcnt lgkmcnt(0)
    s_barrier
    """)
    stamp(20)
    if not cfg.hub:
        a(f"""
        s_mul_i32 s6, s4, 3
        s_add_u32 s6, s6, s42
        s_lshl_b32 s7, s43, 1
        s_add_u32 s7, s7, s54
        s_cmp_eq_u32 s6, s7
        s_cbranch_scc0 L_FIN
        """)
        poll_sel(p_list(O_P2), itstamp=35)
        p_consume(PA)
        stamp(21) if False else None
        final_code()
        a(f"""
        s_or_b32 s6, s2, s54
        s_cmp_eq_u32 s6, 0
        s_cbranch_scc0 L_NOEP2
        v_mov_b32 v2, {EPOCH_OFF}
        s_mov_b64 exec, 1
        buffer_store_dword v47, v2, s[36:39], 0 offen sc1
        s_mov_b64 exec, -1
        L_NOEP2:
        """)
        stamp(22)
    a("s_branch L_FIN")

    def emit_hub():
        a.label("L_HUB")
        srd(56, 8, 2560)
        srd(60, 30, 2560)
        a(f"""
        s_setprio 3
        s_sub_u32 s54, s5, 30              ; b
        v_lshrrev_b32 v1, 4, v0            ; g
        v_and_b32 v2, 15, v0               ; c
        v_lshlrev_b32 v3, 4, v2            ; 16c
        s_lshl_b32 s55, s54, 8             ; 256*b
        v_lshl_add_u32 v4, v2, 2, v1       ; column 4c+g
        s_lshl_b32 s6, s3, 8
        v_lshlrev_b32 v9, 2, v4
        v_add_u32 v9, s6, v9
        v_lshlrev_b32 v4, 1, v4
        s_mul_i32 s6, s54, 1280
        s_lshl_b32 s7, s3, 7
        s_add_u32 s6, s6, s7
        v_add_u32 v11, s6, v4
        buffer_load_ushort v8, v11, s[56:59], 0 offen
        buffer_load_ushort v10, v11, s[60:63], 0 offen
        """)
        for qi, cb0 in enumerate((20, 30, 40, 50)):
            odd = 1 if cb0 >= 30 else 0
            a(f"""
            s_add_u32 s6, s3, {cb0 - 30*odd}
            s_lshl_b32 s6, s6, 3
            s_add_u32 s6, s6, {4*odd}
            s_lshl_b32 s6, s6, 13
            s_add_u32 s6, s6, s55
            v_lshlrev_b32 v5, 13, v1
            v_add3_u32 v{12+qi}, v5, v3, s6
            """)
        def mod_loads():
            for qi in range(4):
                a(f"buffer_load_dwordx4 {rng(48+4*qi,4)}, v{12+qi}, s[36:39], 0 offen offset:{O_MP} sc1")
        for i in range(6):
            a(f"""
            v_add_u32 v5, {4*i}, v1
            v_mul_u32_u24 v6, 86, v5
            v_lshrrev_b32 v6, 8, v6
            v_mul_u32_u24 v7, 3, v6
            v_sub_u32 v5, v5, v7
            v_mul_u32_u24 v5, 10, v5
            v_add_u32 v5, s3, v5
            v_lshlrev_b32 v5, 3, v5
            v_add_u32 v5, v5, v6
            v_lshlrev_b32 v5, 13, v5
            v_add3_u32 v{16+i}, v5, v3, s55
            """)
        a(f"""
        v_lshrrev_b32 v5, 5, v0
        v_lshlrev_b32 v5, 2, v5
        s_lshl_b32 s6, s3, 3
        s_add_u32 s6, s6, {L_S}
        v_add_u32 v29, s6, v5
        v_lshlrev_b32 v28, 3, v2
        v_add_u32 v28, {L_S}, v28
        s_mov_b32 s92, 0x03ff03ff
        s_mov_b32 s93, 0x03ff03ff
        """)
        poll_sel([(f"buffer_load_dwordx4 {rng(48+4*qi,4)}, v{12+qi}, s[36:39], 0 offen offset:{O_MP} sc1", f"v{48+4*qi+3}", None) for qi in range(4)], itstamp=30)
        for qi in range(4): transred(48 + 4*qi)
        a("""v_mov_b32 v32, v48
        v_mov_b32 v33, v52
        v_mov_b32 v34, v56
        v_mov_b32 v35, v60""")
        bfround(vr(32, 4), 40)
        a("v_add_f32 v34, 1.0, v34")
        bfround(['v34'], 40)
        a("v_lshlrev_b32 v30, 16, v8")
        stamp(14)
        PA, PB = 112, 136
        def p_loads(off):
            def f(base):
                for i in range(6):
                    a(f"buffer_load_dwordx4 {rng(base+4*i,4)}, v{16+i}, s[36:39], 0 offen offset:{off} sc1")
            return f
        def p_chk(base): return pick(vr(base, 24), 4)
        def p_consume(base):
            for h in range(2):
                pkadd(64+2*h, base+2*h, base+4+2*h)
                pkadd(68+2*h, base+8+2*h, base+12+2*h)
                pkadd(72+2*h, base+16+2*h, base+20+2*h)
            for h in range(2): pkadd(64+2*h, 64+2*h, 68+2*h)
            for h in range(2): pkadd(64+2*h, 64+2*h, 72+2*h)
            transred(64)
        save = cfg.pipe
        def p_sel(off, itstamp):
            poll_sel([(f"buffer_load_dwordx4 {rng(PA+4*i,4)}, v{16+i}, s[36:39], 0 offen offset:{off} sc1", f"v{PA+4*i+3}", None) for i in range(6)], itstamp=itstamp)
            p_consume(PA)
        for _ in range(cfg.db1): a("s_sleep 16")
        if cfg.sel: p_sel(O_P1, 32)
        else:
            cfg.pipe = cfg.pipe_r
            poll2(p_loads(O_P1), 6, PA, PB, p_chk, p_consume, itstamp=32, space=cfg.sp_r)
            cfg.pipe = save
        stamp(16)
        a(f"""
        v_cvt_pk_bf16_f32 v64, v64, v64
        v_lshlrev_b32 v64, 16, v64
        v_mul_f32 v64, v32, v64
        v_cvt_pk_bf16_f32 v64, v64, v64
        v_lshlrev_b32 v64, 16, v64
        v_add_f32 v30, v30, v64
        v_cvt_pk_bf16_f32 v30, v30, v30
        v_lshlrev_b32 v30, 16, v30         ; x1
        v_mul_f32 v65, v30, v30
        v_mov_b32 v64, v30
        """)
        row16_sum(['v64', 'v65'])
        a(f"""
        v_permlane32_swap_b32 v64, v65
        v_add_f32 v64, v64, v65
        v_mov_b32 v65, v64
        v_permlane16_swap_b32 v64, v65
        v_add_f32 v64, v64, v65
        s_mov_b32 exec_lo, 1
        s_mov_b32 exec_hi, 1
        ds_write_b32 v29, v64
        s_mov_b64 exec, -1
        s_waitcnt lgkmcnt(0)
        s_barrier
        ds_read_b64 v[68:69], v28
        s_waitcnt lgkmcnt(0)
        v_cndmask_b32 v68, 0, v68, s[92:93]
        v_cndmask_b32 v69, 0, v69, s[92:93]
        """)
        stamp(17)
        row16_sum(['v68', 'v69'])
        a(f"""
        v_mul_f32 v68, {fl(1/640)}, v68
        v_mul_f32 v69, {fl(1/640)}, v69
        v_fma_f32 v69, -v68, v68, v69
        v_max_f32 v69, 0, v69
        """)
        ln_finish('v68', 'v69', 70)
        a(f"""
        v_rcp_f32 v71, v69
        v_sub_f32 v64, v30, v68
        v_cvt_pk_bf16_f32 v64, v64, v64
        v_lshlrev_b32 v64, 16, v64
        """)
        fdiv('v72', 'v64', 'v71', 'v69', 'v70')
        a(f"""
        v_cvt_pk_bf16_f32 v72, v72, v72
        v_lshlrev_b32 v72, 16, v72
        v_mul_f32 v72, v72, v34
        v_cvt_pk_bf16_f32 v72, v72, v72
        v_lshlrev_b32 v72, 16, v72
        v_add_f32 v72, v72, v33
        v_cvt_pk_bf16_f32 v72, v72, v72
        v_lshlrev_b32 v72, 16, v72
        v_or_b32 v72, v72, {VTAG}
        """)
        pub_local(f"buffer_store_dword v72, v9, s[36:39], s44 offen offset:{O_H2}")
        stamp(18)
        a(f"""
        s_and_b32 s6, s3, 7
        s_cmp_eq_u32 s6, s4
        s_cbranch_scc0 L_FIN
        """)
        for _ in range(cfg.dc): a("s_sleep 16")
        if cfg.sel: p_sel(O_P2, 35)
        else:
            cfg.pipe = cfg.pipe_c
            a("s_waitcnt vmcnt(0)")
            poll2(p_loads(O_P2), 6, PA, PB, p_chk, p_consume, itstamp=35, space=cfg.sp_r)
            cfg.pipe = save
        stamp(21)
        a(f"""
        v_cvt_pk_bf16_f32 v64, v64, v64
        v_lshlrev_b32 v64, 16, v64
        v_mul_f32 v64, v35, v64
        v_cvt_pk_bf16_f32 v64, v64, v64
        v_lshlrev_b32 v64, 16, v64
        v_add_f32 v64, v30, v64
        v_cvt_pk_bf16_f32 v64, v64, v64
        buffer_store_short v64, v11, s[60:63], 0 offen
        s_or_b32 s6, s54, s3
        s_cmp_eq_u32 s6, 0
        s_cbranch_scc0 L_NOEPOCH
        ds_read_b32 v47, {VF} offset:{F_EPOCH}
        v_mov_b32 v2, {EPOCH_OFF}
        s_waitcnt lgkmcnt(0)
        s_mov_b64 exec, 1
        buffer_store_dword v47, v2, s[36:39], 0 offen sc1
        s_mov_b64 exec, -1
        L_NOEPOCH:
        """)
        stamp(22)
    if cfg.hub: emit_hub()
    a.label("L_FIN")
    prof_out()
    a.label("L_END")
    a("s_endpgm")
    a.label("L_CODE_END")
    body = a.text()
    body += "    .p2align 10, 0\n" if False else ""
    body += f"L_PAD_START:\n    .fill ((1024 - ((L_PAD_START - {KNAME}) % 1024)) % 1024) / 4, 4, 0xbf810000\nL_PAD_END:\n"

    hdr = open('adaLN_cond__sliding_block_cached__geglu_ffn__decode.s.ref').read().split('; Override')[0]
    return f"""{hdr}; Generated by gen/gen3.py (hand-designed schedule; see that file for the structure).
; @launch grid=(256,1,1) block=(768,1,1) lds={LDS_BYTES}
.amdgcn_target "amdgcn-amd-amdhsa--gfx950"
.text
.globl {KNAME}
.p2align 8
.type {KNAME},@function
{KNAME}:
{body}
.section .rodata,"a"
.p2align 6
.amdhsa_kernel {KNAME}
  .amdhsa_next_free_vgpr 168
  .amdhsa_next_free_sgpr 102
  .amdhsa_accum_offset 168
  .amdhsa_group_segment_fixed_size 0
  .amdhsa_kernarg_size 112
  .amdhsa_user_sgpr_count 2
  .amdhsa_user_sgpr_kernarg_segment_ptr 1
  .amdhsa_system_sgpr_workgroup_id_x 1
  .amdhsa_float_denorm_mode_32 3
.end_amdhsa_kernel
"""

if __name__ == "__main__":
    class C(Cfg): pass
    for arg in sys.argv[2:]:
        k, v = arg.split('=')
        setattr(C, k, int(v))
    import subprocess, re
    def size_of(text):
        open('_g.s', 'w').write(text)
        subprocess.run(['clang', '-x', 'assembler', '-target', 'amdgcn-amd-amdhsa', '-mcpu=gfx950', '-c', '_g.s', '-o', '_g.o'], check=True)
        out = subprocess.run(['llvm-readelf', '-S', '_g.o'], capture_output=True, text=True).stdout
        m = re.search(r'\.text\s+PROGBITS\s+\S+\s+\S+\s+(\S+)', out)
        return int(m.group(1), 16)
    C.npiece = 16
    n = size_of(gen(C)) // 1024
    C.npiece = n
    text = gen(C)
    assert size_of(text) // 1024 == n
    open(sys.argv[1], 'w').write(text)
```
